```python
import torch

def _softmax(x, axis=-1):
    return torch.softmax(x, dim=axis)
def _gelu(x):
    return torch.nn.functional.gelu(x, approximate="tanh")
def _silu(x):
    return torch.nn.functional.silu(x)
def _sigmoid(x):
    return torch.sigmoid(x)
def _layernorm(x, axis=-1, eps=1e-5):
    m = x.mean(dim=axis, keepdim=True)
    v = x.var(dim=axis, keepdim=True, unbiased=False)
    return (x - m) / torch.sqrt(v + eps)
def _scatter_add(tgt, idx, src, axis=0):
    return tgt.clone().index_add_(axis, idx, src)
def _segment_sum(src, seg, n):
    out = torch.zeros((n,) + src.shape[1:], dtype=src.dtype)
    return out.index_add_(0, seg, src)
def _pad(x, pw):
    flat = tuple(v for pair in reversed(pw) for v in pair)
    return torch.nn.functional.pad(x, flat)

kernel_name = 'concat_heads__ssm_conv_s4d__linear_attn_block__prompt'

def setup_inputs():

    _w = (lambda a: (lambda t: t.to(torch.bfloat16) if t.is_floating_point() else t)(torch.as_tensor(a)))
    def _A_setup():
        Bsz, L, D, N = 1, 2048, 640, 128
        return {
            "u": _w((lambda *s: torch.randn(*s, dtype=torch.bfloat16) * 0.05)(Bsz, L, D)),
            "log_A_real": _w((lambda *s: torch.randn(*s, dtype=torch.bfloat16) * 3.2)(D, N) * 0.5),
            "A_imag": _w((lambda *s: torch.randn(*s, dtype=torch.bfloat16) * 0.05)(D, N) * 3.14),
            "C_real": _w((lambda *s: torch.randn(*s, dtype=torch.bfloat16) * 0.2)(D, N) / N ** 0.5),
            "C_imag": _w((lambda *s: torch.randn(*s, dtype=torch.bfloat16) * 0.2)(D, N) / N ** 0.5),
            "log_dt": _w((lambda *s: torch.randn(*s, dtype=torch.bfloat16) * 0.05)(D) * 0.5 - 4.0),
            "D_skip": _w((lambda *s: torch.randn(*s, dtype=torch.bfloat16) * 0.05)(D)),
        }
    _A_in = _A_setup()

    def _B_setup():
        B, S, D = 1, 2048, 640
        return {
            "x": _w((lambda *s: torch.randn(*s, dtype=torch.bfloat16) * 0.05)(B, S, D)),
            "wqkv": _w((lambda *s: torch.randn(*s, dtype=torch.bfloat16) * 0.4)(D, 3 * D)),
            "wo": _w((lambda *s: torch.randn(*s, dtype=torch.bfloat16) * 0.05)(D, D)),
        }
    _B_in = _B_setup()

    return {
        "A_u": _A_in["u"],
        "A_log_A_real": _A_in["log_A_real"],
        "A_A_imag": _A_in["A_imag"],
        "A_C_real": _A_in["C_real"],
        "A_C_imag": _A_in["C_imag"],
        "A_log_dt": _A_in["log_dt"],
        "A_D_skip": _A_in["D_skip"],
        "B_x": _B_in["x"],
        "B_wqkv": _B_in["wqkv"],
        "B_wo": _B_in["wo"],
    }

def reference(A_u, A_log_A_real, A_A_imag, A_C_real, A_C_imag, A_log_dt, A_D_skip, B_x, B_wqkv, B_wo):
    def _A_ref(u, log_A_real, A_imag, C_real, C_imag, log_dt, D_skip):
        L = u.shape[1]
        dt = torch.exp(log_dt)
        A = -torch.exp(log_A_real) + 1j * A_imag
        C = (C_real + 1j * C_imag) * dt[:, None]
        pos = (lambda x, dt: x.to(dt))(torch.arange(L), log_dt.dtype)
        P = torch.exp((A * dt[:, None])[:, :, None] * pos[None, None, :])
        K = 2.0 * torch.einsum("dn,dnl->dl", C, P).real
        L2 = 2 * L
        u_t = (lambda x, *d: x.permute(*d))(u, 0, 2, 1)
        Kf = (lambda x, *a, **k: torch.fft.rfft(x.float(), *a, **k))(K, L2)
        Uf = (lambda x, *a, **k: torch.fft.rfft(x.float(), *a, **k))(u_t, L2)
        y = (lambda x, *a, **k: torch.fft.irfft(x, *a, **k).to(torch.bfloat16))(Uf * Kf[None, :, :], L2)[:, :, :L]
        y = (lambda x, *d: x.permute(*d))(y, 0, 2, 1)
        return y + u * D_skip[None, None, :]

    def _B_ref(x, wqkv, wo):
        B, S, D = x.shape
        H = 32; Dh = D // H
        qkv = (lambda x, *d: x.permute(*d))((x @ wqkv).reshape(B, S, 3, H, Dh), 2, 0, 3, 1, 4)
        q, k, v = qkv[0], qkv[1], qkv[2]
        phi = lambda t: torch.where(t > 0, t + 1, torch.exp(t)) + 1e-6
        pq, pk = phi(q), phi(k)
        kv = torch.einsum("bhsd,bhse->bhde", pk, v)
        z = torch.einsum("bhsd->bhd", pk)
        num = torch.einsum("bhqd,bhde->bhqe", pq, kv)
        den = torch.einsum("bhqd,bhd->bhq", pq, z)[..., None] + 1e-6
        o = num / den
        return (lambda x, *d: x.permute(*d))(o, 0, 2, 1, 3).reshape(B, S, D) @ wo

    a = _A_ref(A_u, A_log_A_real, A_A_imag, A_C_real, A_C_imag, A_log_dt, A_D_skip)
    b = _B_ref(B_x, B_wqkv, B_wo)
    return torch.concatenate([a, b], axis=-1)
```

```python
import re
class Asm:
    def __init__(self):
        self.lines = []
        self.lds_issued = 0
        self.lds_done = 0
        self.vm_issued = 0
        self.vm_done = 0
    def __call__(self, s):
        for l in s.split("\n"):
            l = l.strip()
            if l: self.lines.append(l)
    def label(self, n): self.lines.append(n + ":")
    def comment(self, s): self.lines.append("; " + s)
    def lds(self, s):
        self(s); self.lds_issued += 1; return self.lds_issued
    def lds_wait(self, tok):
        if tok <= self.lds_done: return
        n = self.lds_issued - tok
        n = min(n, 15)
        self(f"s_waitcnt lgkmcnt({n})")
        self.lds_done = self.lds_issued - n
    def lds_reset(self): self.lds_issued = self.lds_done = 0
    def vm(self, s):
        self(s); self.vm_issued += 1; return self.vm_issued
    def vm_wait(self, tok):
        if tok <= self.vm_done: return
        n = min(self.vm_issued - tok, 63)
        self(f"s_waitcnt vmcnt({n})")
        self.vm_done = self.vm_issued - n
    def vm_reset(self): self.vm_issued = self.vm_done = 0
    def text(self): return "\n".join(self.lines) + "\n"

def vr(b, n=1):
    return f"v{b}" if n == 1 else f"v[{b}:{b+n-1}]"
def sr(b, n=1):
    return f"s{b}" if n == 1 else f"s[{b}:{b+n-1}]"

_reg = re.compile(r"^(-|abs\()?([vas])(?:(\d+)|\[(\d+):(\d+)\])\)?$")
def _regs(tok):
    m = _reg.match(tok.strip())
    if not m: return None
    f = m.group(2)
    if m.group(3) is not None: lo = hi = int(m.group(3))
    else: lo, hi = int(m.group(4)), int(m.group(5))
    return {(f, i) for i in range(lo, hi + 1)}
TRANS = ("v_exp_f32", "v_log_f32", "v_rcp_f32", "v_rsq_f32", "v_sqrt_f32", "v_sin_f32", "v_cos_f32")
def parse(line):
    line = line.split(";")[0].strip()
    if not line or line.endswith(":") or line.startswith("."): return None
    parts = line.split(None, 1)
    mn = parts[0]
    ops = []
    if len(parts) > 1:
        depth = 0; cur = ""
        for ch in parts[1]:
            if ch == "[": depth += 1
            if ch == "]": depth -= 1
            if ch == "," and depth == 0: ops.append(cur.strip()); cur = ""
            else: cur += ch
        ops.append(cur.strip())
        ops = [o.split()[0] if o else o for o in ops]
    R = [(_regs(o) or set()) for o in ops]
    for i, o in enumerate(ops):
        if o == "vcc": R[i] = {("s", 106), ("s", 107)}
        if o == "m0": R[i] = {("s", 124)}
        if o == "exec": R[i] = {("s", 126), ("s", 127)}
    d = dict(mn=mn, w=set(), r=set(), kind="other", srcc=set(), ab=set(), line=line)
    allr = lambda l: set().union(*l) if l else set()
    if mn.startswith("v_mfma"):
        d.update(kind="mfma", w=R[0], r=allr(R[1:4]), srcc=R[3], ab=R[1] | R[2])
        d["passes"] = 8 if "32x32" in mn else 4
    elif mn.startswith("v_"):
        d.update(kind="valu", w=R[0], r=allr(R[1:]))
        if mn.startswith(("v_fmac", "v_writelane")) or "dpp" in line or "row_" in line or "wave_" in line: d["r"] |= R[0]
        if mn.startswith("v_permlane"): d["w"] = R[0] | R[1]; d["r"] = R[0] | R[1]
        if mn.startswith(("v_add_co", "v_addc_co", "v_sub_co")): d["w"] = R[0] | R[1]; d["r"] = allr(R[2:])
        if mn.startswith("v_cndmask") and len(ops) == 3: d["r"] |= {("s", 106), ("s", 107)}
        d["trans"] = mn.replace("_e64", "").replace("_e32", "") in TRANS
    elif mn.startswith("ds_"):
        if mn.startswith(("ds_read", "ds_bpermute", "ds_permute", "ds_swizzle")): d.update(kind="ds", w=R[0], r=allr(R[1:]))
        else: d.update(kind="ds", r=allr(R))
        if "addtid" in mn: d["r"] |= {("s", 124)}
    elif mn.startswith(("buffer_", "global_")):
        islds = " lds" in line
        if "load" in mn and not islds: d.update(kind="vmem", w=R[0], r=allr(R[1:]))
        elif "atomic" in mn and " sc0" in line and mn.startswith("global"): d.update(kind="vmem", w=R[0], r=allr(R[1:]))
        elif "atomic" in mn and " sc0" in line: d.update(kind="vmem", w=R[0], r=allr(R))
        else: d.update(kind="vmem", r=allr(R))
        if islds: d["r"] |= {("s", 124)}
        d["wide_store"] = ("store_dwordx4" in mn or "store_dwordx3" in mn)
        if d["wide_store"]: d["sdata"] = R[0] if mn.startswith("buffer") else R[1]
    elif mn.startswith("s_"):
        d.update(kind="salu")
        if not mn.startswith(("s_cmp", "s_cbranch", "s_branch", "s_waitcnt", "s_nop", "s_barrier", "s_endpgm", "s_setprio", "s_sleep")):
            d.update(w=R[0] if R else set(), r=allr(R[1:]))
        else: d.update(r=allr(R))
        if mn == "s_nop": d["nop"] = int(ops[0], 0) + 1
    return d

def check_hazards(lines):
    ins = [p for p in (parse(l) for l in lines) if p]
    msgs = []
    for i, c in enumerate(ins):
        dist = 0
        for j in range(i - 1, max(-1, i - 24), -1):
            p = ins[j]
            need = 0
            pw_v = {x for x in p["w"] if x[0] in "va"}
            pw_s = {x for x in p["w"] if x[0] == "s"}
            if p["kind"] == "mfma":
                n = p["passes"]
                if c["kind"] == "mfma":
                    if pw_v & c["ab"]: need = max(need, n + 4)
                    if pw_v & c["srcc"] and not (c["srcc"] == pw_v and c["passes"] == n): need = max(need, n + 2)
                    if pw_v & c["w"] and c["w"] != c["srcc"] : need = max(need, n + 4)
                elif c["kind"] in ("valu", "ds", "vmem"):
                    if pw_v & (c["r"] | c["w"]): need = max(need, n + 4)
                    if c["kind"] == "valu" and p["srcc"] & c["w"]: need = max(need, n - 1)
            if p["kind"] == "valu":
                if c["kind"] == "mfma" and pw_v & c["r"]: need = max(need, 2)
                if p.get("trans") and c["kind"] == "valu" and not c.get("trans") and pw_v & c["r"]: need = max(need, 1)
                if p.get("trans") and c["kind"] in ("ds", "vmem") and pw_v & c["r"]: need = max(need, 1)
                if c["kind"] == "valu" and c["mn"].startswith(("v_readfirstlane", "v_readlane")) and pw_v & c["r"]: need = max(need, 1)
                if c["kind"] == "valu" and c["mn"].startswith("v_permlane") and pw_v & c["r"]: need = max(need, 2)
                if c["kind"] == "valu" and ("dpp" in c["line"] or "row_" in c["line"] or "wave_" in c["line"]) and pw_v & c["r"]: need = max(need, 2)
                if pw_s & c["r"]:
                    if c["kind"] == "vmem": need = max(need, 5)
                    elif c["kind"] == "valu": need = max(need, 4 if c["mn"].startswith(("v_readlane", "v_writelane")) else 2)
                    elif c["kind"] == "salu": need = max(need, 1)
            if p["kind"] == "salu" and ("s", 124) in pw_s and ("s", 124) in c["r"] and c["kind"] in ("ds", "vmem"): need = max(need, 1)
            if p["kind"] == "vmem" and p.get("wide_store") and p["sdata"] & c["w"]: need = max(need, 2)
            if need > dist:
                msgs.append(f"hazard: need {need} have {dist}: [{p['line']}] -> [{c['line']}]")
            dist += p.get("nop", 1)
            if p["mn"] in ("s_endpgm", "s_branch"): break
    return msgs
```

```python
import sys, struct
from asmlib import *
NAME = "concat_heads__ssm_conv_s4d__linear_attn_block__prompt"
def f2u(x): return struct.unpack("<I", struct.pack("<f", x))[0]
LOG2E = f2u(1.4426950408889634)
INV2PI = f2u(0.15915494309189535)
EPS = f2u(1e-6)
LDS_BYTES = 143360
WS_PQ = 0
WS_KV = 0x300000
P_U, P_LA, P_AI, P_CR, P_CI, P_LDT, P_DSK, P_X = [16 + 2*i for i in range(8)]
P_W, P_WO, P_OUT, P_DBG = 32, 34, 36, 38
P_WS = 40
S_W = 3

def srd(a, d, p, size, off=None):
    if off is None:
        a(f"s_mov_b32 s{d}, s{p}")
        a(f"s_mov_b32 s{d+1}, s{p+1}")
    else:
        a(f"s_add_u32 s{d}, s{p}, {off}")
        a(f"s_addc_u32 s{d+1}, s{p+1}, 0")
    a(f"s_mov_b32 s{d+2}, {size}")
    a(f"s_mov_b32 s{d+3}, 0x20000")

def prologue(a, tag):
    a("s_cmp_ge_u32 s2, 256")
    a("s_cbranch_scc1 Lend")
    a("s_load_dwordx16 s[16:31], s[0:1], 0")
    a("s_load_dwordx8 s[32:39], s[0:1], 64")
    a("s_load_dwordx2 s[40:41], s[0:1], 96")
    a("v_lshrrev_b32 v2, 6, v0")
    a("v_and_b32 v1, 63, v0")
    a("s_cmp_ge_u32 s2, 16")
    a(f"s_cbranch_scc1 Lnopf_{tag}")
    a("s_getpc_b64 s[64:65]")
    a.label(f"Lpc_{tag}")
    a(f"s_sub_u32 s64, s64, Lpc_{tag}-Lcode_start")
    a("s_subb_u32 s65, s65, 0")
    a("v_lshlrev_b32 v3, 7, v0")
    a("v_min_u32 v3, Lcode_end-Lcode_start-4, v3")
    a("global_load_dword v255, v3, s[64:65]")
    a.label(f"Lnopf_{tag}")
    a(f"v_readfirstlane_b32 s{S_W}, v2")
    a("s_and_b32 s44, s2, 7")
    a("s_lshr_b32 s45, s2, 3")

def cmul(a, d, x, w):
    a(f"v_pk_mul_f32 {vr(d,2)}, {vr(x,2)}, {vr(w,2)} op_sel_hi:[1,0]")
    a(f"v_pk_fma_f32 {vr(d,2)}, {vr(x,2)}, {vr(w,2)}, {vr(d,2)} op_sel:[1,1,0] op_sel_hi:[0,1,1] neg_lo:[1,0,0]")

U_OFF, U_STR = 0, 1152
TAB_OFF, TAB_STR, ROW = 18432, 15504, 272
KX_REL, YS_REL = 4096, 8448
def gen_A(a):
    a.label("LA")
    a.lds_reset(); a.vm_reset()
    a("s_and_b32 s46, s3, 3")
    a("s_lshr_b32 s47, s3, 2")
    a("s_add_u32 s48, s42, s46")
    a("s_waitcnt lgkmcnt(0)")
    a("s_lshl_b32 s49, s48, 8")
    a("s_lshl_b32 s50, s47, 7")
    a("s_add_u32 s49, s49, s50")
    a("v_lshlrev_b32 v4, 1, v1")
    a("v_add_u32 v4, s49, v4")
    a("s_lshl_b32 s50, s48, 1")
    a("v_mov_b32 v5, s50")
    a.vm(f"global_load_ushort v20, v5, s[{P_LDT}:{P_LDT+1}]")
    a.vm(f"global_load_ushort v16, v4, s[{P_LA}:{P_LA+1}]")
    a.vm(f"global_load_ushort v17, v4, s[{P_AI}:{P_AI+1}]")
    a.vm(f"global_load_ushort v18, v4, s[{P_CR}:{P_CR+1}]")
    a.vm(f"global_load_ushort v19, v4, s[{P_CI}:{P_CI+1}]")
    tpar = a.vm(f"global_load_ushort v21, v5, s[{P_DSK}:{P_DSK+1}]")
    srd(a, 4, P_U, 2048*1280)
    a("s_lshl_b32 s50, s47, 6")
    a("v_add_u32 v6, s50, v1")
    a("v_mul_u32_u24 v7, 20480, v6")
    a("s_mul_i32 s50, s46, 1280")
    a("s_lshl_b32 s51, s42, 1")
    a("s_add_u32 s50, s50, s51")
    for t in range(4):
        tu = a.vm(f"buffer_load_dwordx2 {vr(8+2*t,2)}, v7, s[4:7], s50 offen")
        if t < 3: a("s_add_u32 s50, s50, 5120")
    a("v_lshrrev_b32 v2, 5, v0")
    a(f"v_mul_u32_u24 v2, {U_STR}, v2")
    a("v_and_b32 v3, 31, v0")
    a("v_lshl_add_u32 v2, v3, 2, v2")
    a("v_mov_b32 v3, 0")
    a.lds(f"ds_write_b32 v2, v3 offset:{U_OFF}")
    a(f"s_mul_i32 s50, s46, {U_STR}")
    a("v_lshlrev_b32 v6, 3, v6")
    a("v_add_u32 v6, s50, v6")
    a(f"s_mul_i32 s52, s3, {TAB_STR}")
    a(f"s_add_u32 s52, s52, {TAB_OFF}")
    a("s_mov_b32 m0, s52")
    a(f"s_mov_b32 s53, {LOG2E}")
    a(f"s_mov_b32 s54, {INV2PI}")
    a("s_mov_b32 s55, 0x43000000")
    a("v_and_b32 v22, 15, v1")
    a("v_lshrrev_b32 v23, 4, v1")
    a(f"v_mul_u32_u24 v54, {ROW}, v22")
    a("v_lshl_add_u32 v54, v23, 4, v54")
    a("v_add_u32 v54, s52, v54")
    a.vm_wait(tpar)
    for r in (16, 17, 18, 19, 20, 21): a(f"v_lshlrev_b32 v{r}, 16, v{r}")
    a("v_mul_f32 v20, s53, v20")
    a("v_mul_f32 v16, s53, v16")
    a("v_exp_f32 v20, v20")
    a("v_exp_f32 v16, v16")
    a("s_nop 0")
    a("v_cvt_pk_bf16_f32 v16, v20, v16")
    a("v_lshlrev_b32 v20, 16, v16")
    a("v_and_b32 v16, 0xffff0000, v16")
    a("v_mul_f32 v16, v16, v20")
    a("v_mul_f32 v17, v17, v20")
    a("v_mul_f32_e64 v16, -v16, s53")
    a("v_mul_f32 v17, s54, v17")
    a("v_add_f32 v20, v20, v20")
    a("v_mul_f32 v34, v18, v20")
    a("v_mul_f32 v35, v19, v20")
    a("v_mul_f32 v18, s55, v16")
    a("v_mul_f32 v19, s55, v17")
    a("v_fract_f32 v17, v17")
    a("v_fract_f32 v19, v19")
    a("v_exp_f32 v16, v16")
    a("v_exp_f32 v18, v18")
    a("v_cos_f32 v24, v17")
    a("v_sin_f32 v25, v17")
    a("v_cos_f32 v32, v19")
    a("v_sin_f32 v33, v19")
    a("v_mul_f32 v24, v24, v16")
    a("v_mul_f32 v25, v25, v16")
    a("v_mul_f32 v32, v32, v18")
    a("v_mul_f32 v33, v33, v18")
    W1, W2, W4, W8, W128 = 24, 26, 28, 30, 32
    cmul(a, W2, W1, W1); cmul(a, W4, W2, W2); cmul(a, W8, W4, W4)
    a("v_xor_b32 v31, 0x80000000, v31")
    tmp = [46]
    def put(row, x):
        t = tmp[0]; tmp[0] = 46 + (t - 46 + 1) % 8
        a(f"v_cvt_pk_bf16_f32 v{t}, v{x}, v{x+1}")
        a.lds(f"ds_write_addtid_b32 v{t} offset:{row*ROW}")
    a("v_mov_b32 v53, 0x3f80")
    a.lds(f"ds_write_addtid_b32 v53 offset:{41*ROW}")
    put(42, W8)
    y = W8
    for j in range(2, 16):
        d = 42 + 2*(j & 1)
        cmul(a, d, y, W8); put(41 + j, d); y = d
    g = 34; row = 0
    for h in range(17):
        put(row, g); row += 1
        if h < 2: steps, w = 7, W1
        elif h < 4: steps, w = 3, W2
        elif h < 8: steps, w = 1, W4
        else: steps = 0
        x = g
        for s in range(steps):
            d = 38 + 2*(s & 1)
            cmul(a, d, x, w); put(row, d); row += 1; x = d
        if h < 16:
            gn = 34 + (36 - g) + 0 if False else (36 if g == 34 else 34)
            cmul(a, gn, g, W128); g = gn
    assert row == 41
    toks = {}
    for k in range(4):
        toks[('y', k)] = a.lds(f"ds_read_b128 {vr(112+4*k,4)}, v54 offset:{41*ROW + 64*k}")
        for t in range(3):
            toks[(t, k)] = a.lds(f"ds_read_b128 {vr(64+16*t+4*k,4)}, v54 offset:{16*t*ROW + 64*k}")
    a("s_mov_b32 s56, 0x05040100")
    a("s_mov_b32 s57, 0x07060302")
    a.vm_wait(tu)
    for ch in range(4):
        sel = "s56" if ch % 2 == 0 else "s57"
        dw = ch // 2
        a(f"v_perm_b32 v{56+2*ch}, v{10+dw}, v{8+dw}, {sel}")
        a(f"v_perm_b32 v{57+2*ch}, v{14+dw}, v{12+dw}, {sel}")
    a("v_lshrrev_b32 v2, 1, v23")
    a("v_and_b32 v3, 1, v23")
    a("v_lshlrev_b32 v8, 9, v2")
    a("v_lshl_add_u32 v8, v3, 4, v8")
    a("v_lshl_add_u32 v8, v22, 5, v8")
    a("v_add_u32 v8, s52, v8")
    a("v_sub_u32 v3, 4, v2")
    a("v_lshlrev_b32 v9, v3, v22")
    a("v_lshl_add_u32 v9, v23, 8, v9")
    a("v_add_u32 v9, s52, v9")
    a("v_mul_u32_u24 v3, 120, v2")
    a("v_add3_u32 v10, v9, v3, 8")
    a("v_lshlrev_b32 v11, 8, v23")
    a("v_lshl_add_u32 v11, v22, 2, v11")
    a("v_add_u32 v11, s52, v11")
    a("v_add_u32 v11, 2048, v11")
    for k in range(4):
        for t in range(3):
            a.lds_wait(toks[(t, k)])
            c = "0" if k == 0 else vr(128+4*t, 4)
            a(f"v_mfma_f32_16x16x32_bf16 {vr(128+4*t,4)}, {vr(64+16*t+4*k,4)}, {vr(112+4*k,4)}, {c}")
    for ch in range(4):
        a.lds(f"ds_write_b64 v6, {vr(56+2*ch,2)} offset:{U_OFF + 4*ch*U_STR + 128}")
    a("s_nop 3")
    a.lds(f"ds_write_b128 v8, {vr(128,4)}")
    a.lds(f"ds_write_b64 v9, {vr(132,2)} offset:1024")
    a.lds(f"ds_write_b64 v10, {vr(134,2)} offset:1024")
    a.lds(f"ds_write2_b32 v11, v136, v137 offset0:0 offset1:16")
    a.lds(f"ds_write2_b32 v11, v138, v139 offset0:32 offset1:48")
    a("s_waitcnt lgkmcnt(0)")
    a("s_barrier")
    a.lds_reset()
    a("s_cmp_ge_u32 s3, 4")
    a("s_cbranch_scc1 LA_final")
    D2 = 4*TAB_STR
    a("v_lshlrev_b32 v2, 4, v1")
    a("v_add_u32 v2, s52, v2")
    a("v_lshlrev_b32 v3, 3, v1")
    a("v_add_u32 v3, s52, v3")
    t0 = a.lds(f"ds_read_b128 v[8:11], v2")
    t0 = a.lds(f"ds_read_b128 v[12:15], v2 offset:{D2}")
    tr = []
    for R, base in enumerate((256, 384, 512)):
        b = 24 + 8*R
        a.lds(f"ds_read_b64 {vr(b,2)}, v3 offset:{4*base}")
        a.lds(f"ds_read_b32 v{b+2}, v3 offset:{4*base+8}")
        a.lds(f"ds_read_b64 {vr(b+4,2)}, v3 offset:{4*base+D2}")
        tr.append(a.lds(f"ds_read_b32 v{b+6}, v3 offset:{4*base+8+D2}"))
    a("v_cmp_eq_u32 vcc, 0, v1")
    a("v_mov_b32 v4, 0")
    a("v_and_b32 v5, 7, v1")
    a("v_lshlrev_b32 v5, 2, v5")
    a("v_add_u32 v5, s52, v5")
    a("v_cndmask_b32 v21, v4, v21, vcc")
    a.lds(f"ds_write_b32 v5, v4 offset:{KX_REL}")
    a("v_lshlrev_b32 v7, 5, v1")
    a("v_add_u32 v7, s52, v7")
    a.lds_wait(t0)
    for i in range(4): a(f"v_add_f32 v{8+i}, v{8+i}, v{12+i}")
    a("v_add_f32 v8, v8, v21")
    a("v_cvt_pk_bf16_f32 v12, v8, v9")
    a("v_cvt_pk_bf16_f32 v13, v10, v11")
    a.lds(f"ds_write_b64 v3, v[12:13] offset:{KX_REL+32}")
    for R in range(3):
        b = 24 + 8*R
        a.lds_wait(tr[R])
        for i in range(3): a(f"v_add_f32 v{b+i}, v{b+i}, v{b+4+i}")
        A_, B_, C_ = b, b+1, b+2
        pats = [[(A_,A_),(B_,C_)], [(A_,A_),(A_,B_),(B_,B_),(C_,C_)],
                [(A_,A_),(A_,A_),(A_,B_),(B_,B_),(B_,B_),(B_,B_),(C_,C_),(C_,C_)]][R]
        o = [48, 52, 56][R]
        for i, (x, y) in enumerate(pats): a(f"v_cvt_pk_bf16_f32 v{o+i}, v{x}, v{y}")
        if R == 0: a.lds(f"ds_write_b64 v3, v[48:49] offset:{KX_REL+32+512}")
        elif R == 1: a.lds(f"ds_write_b128 v2, v[52:55] offset:{KX_REL+32+1024}")
        else:
            a.lds(f"ds_write_b128 v7, v[56:59] offset:{KX_REL+32+2048}")
            a.lds(f"ds_write_b128 v7, v[60:63] offset:{KX_REL+32+2048+16}")
    a("v_and_b32 v4, 3, v1")
    a("v_bfe_u32 v5, v1, 2, 2")
    a("v_sub_u32 v4, v4, v5")
    a("v_lshlrev_b32 v5, 3, v23")
    a("v_sub_u32 v4, v4, v5")
    a("v_add_u32 v4, 28, v4")
    a("v_lshlrev_b32 v4, 3, v4")
    a("v_add_u32 v4, s52, v4")
    a(f"s_mul_i32 s50, s3, {4*U_STR}")
    a("v_lshlrev_b32 v5, 3, v22")
    a("v_lshl_add_u32 v5, v23, 4, v5")
    a("v_add_u32 v5, s50, v5")
    a("v_subrev_u32 v6, 16, v1")
    a("v_add_u32 v7, 47, v1")
    a("v_cmp_gt_u32 vcc, 16, v1")
    a("s_mov_b32 s58, 0")
    a("s_mov_b32 s59, 0x80000000")
    a("v_cndmask_b32 v6, v6, v7, vcc")
    a("v_cmp_eq_u32 vcc, 0, v1")
    a("v_mov_b32 v7, 63")
    a("v_mov_b32 v16, 0")
    a("v_cndmask_b32 v6, v6, v7, vcc")
    a("v_lshlrev_b32 v6, 2, v6")
    a("v_mov_b32 v17, 0")
    a("v_mov_b32 v18, 0")
    AOP, ACC, BR, NB = 64, 128, 24, 10
    seq = [(r, rho) for r in range(-1, 15) for rho in range(4)]
    btok = {}
    def issueB(n):
        r, rho = seq[n]; b = BR + 4*(n % NB)
        off = U_OFF + rho*U_STR + 8 + 64*(r+1)
        a.lds(f"ds_read_b64 {vr(b,2)}, v5 offset:{off}")
        btok[n] = a.lds(f"ds_read_b64 {vr(b+2,2)}, v5 offset:{off+8}")
    atok = {}
    def issueA(s):
        a.lds(f"ds_read_b64_tr_b16 {vr(AOP+4*s,2)}, v4 offset:{KX_REL + 256*s + 32}")
        atok[s] = a.lds(f"ds_read_b64_tr_b16 {vr(AOP+4*s+2,2)}, v4 offset:{KX_REL + 256*s}")
    a("s_waitcnt lgkmcnt(0)")
    a.lds_reset()
    issueB(0)
    for s in range(1, 16, 2): issueA(s)
    issueB(1); issueB(2); issueB(3)
    pendA = list(range(0, 16, 2))
    PD = 4
    nextB = 4
    acc = lambda rho, q, i=None: (ACC + 32*rho + 4*q) + (0 if i is None else i)
    epi = []
    def make_epi(q):
        C = lambda rho, i: f"v{acc(rho, q, i)}"
        prev = (lambda i: f"v{16+i}") if q == 0 else (lambda i: f"v{[acc(1,q-1,3), acc(2,q-1,3), acc(3,q-1,3)][i]}")
        L = []
        L.append(lambda: a(f"v_add_f32 {C(1,3)}, {C(1,3)}, {C(2,2)}"))
        L.append(lambda: a(f"v_add_f32 {C(2,3)}, {C(2,3)}, {C(3,2)}"))
        L.append(lambda: a(f"v_add_f32 {C(1,3)}, {C(1,3)}, {C(3,1)}"))
        L.append(lambda: a(f"v_cndmask_b32 v10, {C(3,3)}, {prev(2)}, s[58:59]"))
        L.append(lambda: a(f"v_cndmask_b32 v9, {C(2,3)}, {prev(1)}, s[58:59]"))
        L.append(lambda: a(f"v_cndmask_b32 v8, {C(1,3)}, {prev(0)}, s[58:59]"))
        tk = {}
        for i in (2, 1, 0):
            L.append(lambda i=i: tk.__setitem__(i, a.lds(f"ds_bpermute_b32 v{12+i}, v6, v{8+i}")))
        L.append(lambda: a(f"v_add_f32 {C(0,1)}, {C(0,1)}, {C(1,0)}"))
        L.append(lambda: a(f"v_add_f32 {C(0,2)}, {C(0,2)}, {C(1,1)}"))
        L.append(lambda: a(f"v_add_f32 {C(0,3)}, {C(0,3)}, {C(1,2)}"))
        L.append(lambda: a(f"v_add_f32 {C(0,2)}, {C(0,2)}, {C(2,0)}"))
        L.append(lambda: a(f"v_add_f32 {C(0,3)}, {C(0,3)}, {C(2,1)}"))
        L.append(lambda: a(f"v_add_f32 {C(0,3)}, {C(0,3)}, {C(3,0)}"))
        L.append(None); L.append(None); L.append(None); L.append(None)
        def fin(i):
            a.lds_wait(tk[i]); a(f"v_add_f32 {C(0,i)}, {C(0,i)}, v{12+i}")
        for i in (2, 1, 0): L.append(lambda i=i: fin(i))
        L.append(lambda: a(f"v_cvt_pk_bf16_f32 {C(1,1)}, {C(0,2)}, {C(0,3)}"))
        L.append(lambda: a(f"v_cvt_pk_bf16_f32 {C(1,0)}, {C(0,0)}, {C(0,1)}"))
        L.append(lambda: a.lds(f"ds_write_b64 v3, {vr(acc(1,q),2)} offset:{YS_REL + 512*q}"))
        return L
    delay = 0
    for n, (r, rho) in enumerate(seq):
        b = BR + 4*(n % NB)
        qs = [q for q in range(8) if 0 <= 2*q - r <= 15]
        a.lds_wait(btok[n])
        for qi, q in enumerate(qs):
            s = 2*q - r
            a.lds_wait(atok[s])
            c = "0" if r == -1 else vr(acc(rho, q), 4)
            a(f"v_mfma_f32_16x16x32_bf16 {vr(acc(rho,q),4)}, {vr(AOP+4*s,4)}, {vr(b,4)}, {c}")
            if qi == 0:
                while nextB < len(seq) and nextB <= n + (PD if r < 8 else 7): issueB(nextB); nextB += 1
            elif pendA and n >= 1: issueA(pendA.pop(0))
            if delay > 0: delay -= 1
            else:
                for _ in range(2):
                    if epi:
                        f = epi.pop(0)
                        if f: f()
        if rho == 3 and r >= 0 and r % 2 == 0:
            if not epi: delay = 8
            else: epi.extend([None]*8)
            epi.extend(make_epi(r // 2))
    a("s_nop 7")
    for f in epi:
        if f: f()
    a("s_waitcnt lgkmcnt(0)")
    a.label("LA_final")
    a("v_and_b32 v4, 3, v1")
    a("v_bfe_u32 v5, v1, 2, 2")
    a(f"v_mul_u32_u24 v5, {TAB_STR}, v5")
    a("v_lshl_add_u32 v5, v4, 7, v5")
    a("v_lshl_add_u32 v5, v23, 3, v5")
    a("s_lshl_b32 s50, s3, 9")
    a("v_add_u32 v5, s50, v5")
    srd(a, 8, P_OUT, 2048*2560)
    a("v_mul_u32_u24 v7, 2560, v1")
    a("s_mul_i32 s50, s3, 655360")
    a("s_lshl_b32 s51, s42, 1")
    a("s_add_u32 s50, s50, s51")
    a("s_barrier")
    for n in range(4):
        a(f"ds_read_b64_tr_b16 {vr(8+2*n,2)}, v5 offset:{TAB_OFF + YS_REL + 32*n}")
    for n in range(4):
        a(f"s_waitcnt lgkmcnt({3-n})")
        a(f"buffer_store_dwordx2 {vr(8+2*n,2)}, v7, s[8:11], s50 offen")
        if n < 3: a("s_add_u32 s50, s50, 163840")
    a("s_endpgm")

CH_BYTES = 20480
NBUF = 7
def phi2(a, x, t):
    a(f"v_pk_mul_f32 {vr(t,2)}, {vr(x,2)}, s[60:61]")
    a(f"v_max_f32 v{x}, s62, v{x}")
    a(f"v_exp_f32 v{t}, v{t} clamp")
    a(f"v_exp_f32 v{t+1}, v{t+1} clamp")
    a(f"v_max_f32 v{x+1}, s62, v{x+1}")
    a(f"v_pk_add_f32 {vr(x,2)}, {vr(x,2)}, {vr(t,2)}")

def gen_G1(a):
    a.label("LG1")
    a("s_and_b32 s46, s44, 3")
    a("s_lshl_b32 s46, s46, 2")
    a("s_and_b32 s47, s45, 3")
    a("s_add_u32 s46, s46, s47")
    a("s_lshr_b32 s47, s45, 2")
    a("s_lshr_b32 s48, s44, 2")
    a("s_cmp_ge_u32 s47, 4")
    a("s_cselect_b32 s63, 1, 0")
    a("s_cbranch_scc1 LG1_q0")
    a("s_lshl_b32 s49, s48, 2")
    a("s_add_u32 s49, s49, s47")
    a("s_mul_i32 s50, s49, 160")
    a("s_add_u32 s50, s50, 1280")
    a("s_mov_b32 s51, 1120")
    a("s_branch LG1_c")
    a.label("LG1_q0")
    a("s_lshl_b32 s49, s48, 1")
    a("s_add_u32 s49, s49, s47")
    a("s_sub_u32 s49, s49, 4")
    a("s_mul_i32 s50, s49, 320")
    a("s_mov_b32 s51, 0")
    a.label("LG1_c")
    a("s_cmp_ge_u32 s3, 4")
    a("s_cbranch_scc1 LG1_load")
    a("s_waitcnt lgkmcnt(0)")
    srd(a, 4, P_X, 2048*1280)
    a("v_and_b32 v2, 15, v1")
    a("v_lshrrev_b32 v3, 4, v1")
    a("v_mul_u32_u24 v4, 1280, v2")
    a("v_lshl_add_u32 v4, v3, 4, v4")
    a("s_lshl_b32 s52, s46, 2")
    a("s_add_u32 s52, s52, s3")
    a("s_mul_i32 s53, s52, 40960")
    a("s_add_u32 s54, s53, 20480")
    ACC, AR, NA, BR, NBR, PD = 16, 96, 10, 176, 10, 7
    a.vm_reset(); a.lds_reset()
    atok = {}
    def loadA(st):
        b = AR + 8*(st % NA)
        a.vm(f"buffer_load_dwordx4 {vr(b,4)}, v4, s[4:7], s53 offen offset:{64*st}")
        atok[st] = a.vm(f"buffer_load_dwordx4 {vr(b+4,4)}, v4, s[4:7], s54 offen offset:{64*st}")
    for st in range(NA): loadA(st)
    a("v_bfe_u32 v5, v1, 2, 2")
    a("v_lshl_add_u32 v5, v3, 3, v5")
    a("v_mul_u32_u24 v5, 320, v5")
    a("v_and_b32 v6, 3, v1")
    a("v_lshl_add_u32 v5, v6, 3, v5")
    a("v_and_b32 v6, 1, v3")
    a("v_lshlrev_b32 v6, 5, v6")
    a("v_add_u32 v8, v5, v6")
    a("v_sub_u32 v9, v5, v6")
    a("v_add_u32 v9, 32, v9")
    for i in (1, 2):
        a(f"v_add_u32 v{8+2*i}, {3*CH_BYTES*i}, v8")
        a(f"v_add_u32 v{9+2*i}, {3*CH_BYTES*i}, v9")
    a(f"s_mov_b32 s60, {LOG2E}")
    a(f"s_mov_b32 s61, {LOG2E}")
    a(f"s_mov_b32 s62, {EPS}")
    a("s_cmp_eq_u32 s63, 1")
    a("s_cbranch_scc1 LG1_qloop")
    vm0 = (a.vm_issued, a.vm_done)
    for variant in ("kv", "q"):
        if variant == "q":
            a.label("LG1_qloop")
            a.vm_issued, a.vm_done = vm0
            for st in range(NA): atok[st] = 2*st + 2
        a.lds_reset()
        btok = {}
        def issueB(n):
            st, T = divmod(n, 10)
            ch = st // 2
            if n % 20 == 0:
                a("s_barrier")
            buf = ch % NBUF
            base = 8 + 2*(buf // 3) + (T & 1)
            off = (buf % 3)*CH_BYTES + (st % 2)*32*320 + (T & ~1)*32
            b = BR + 4*(n % NBR)
            a.lds(f"ds_read_b64_tr_b16 {vr(b,2)}, v{base} offset:{off}")
            btok[n] = a.lds(f"ds_read_b64_tr_b16 {vr(b+2,2)}, v{base} offset:{off+1280}")
        for n in range(PD): issueB(n)
        for n in range(200):
            st, T = divmod(n, 10)
            if T == 0: a.vm_wait(atok[st])
            a.lds_wait(btok[n])
            b = BR + 4*(n % NBR)
            ab = AR + 8*(st % NA)
            for rt in range(2):
                ac = ACC + 8*T + 4*rt
                c = "0" if st == 0 else vr(ac, 4)
                if variant == "kv":
                    a(f"v_mfma_f32_16x16x32_bf16 {vr(ac,4)}, {vr(ab+4*rt,4)}, {vr(b,4)}, {c}")
                else:
                    a(f"v_mfma_f32_16x16x32_bf16 {vr(ac,4)}, {vr(b,4)}, {vr(ab+4*rt,4)}, {c}")
                if rt == 0 and n + PD < 200: issueB(n + PD)
            if T == 9 and st + NA < 20: loadA(st + NA)
        if variant == "kv":
            for T in range(5):
                for rt in range(2):
                    ac = ACC + 8*T + 4*rt
                    phi2(a, ac, 176); phi2(a, ac+2, 178)
                    a(f"v_cvt_pk_bf16_f32 v{96+4*T+2*rt}, v{ac}, v{ac+1}")
                    a(f"v_cvt_pk_bf16_f32 v{96+4*T+2*rt+1}, v{ac+2}, v{ac+3}")
            for T in range(5, 10):
                for rt in range(2):
                    ac = ACC + 8*T + 4*rt
                    a(f"v_cvt_pk_bf16_f32 v{96+4*T+2*rt}, v{ac}, v{ac+1}")
                    a(f"v_cvt_pk_bf16_f32 v{96+4*T+2*rt+1}, v{ac+2}, v{ac+3}")
            for i in range(4): a(f"v_mov_b32 v{136+i}, 0x3f803f80")
            a("v_mul_u32_u24 v5, 80, v2")
            a("v_lshl_add_u32 v5, v3, 4, v5")
            a("s_mul_i32 s52, s3, 6720")
            a(f"s_add_u32 s52, s52, {3*CH_BYTES}")
            a("v_add_u32 v5, s52, v5")
            pairs = [(bt, at) for bt in range(5) for at in range(5) if abs(bt - at) <= 1]
            for i, (bt, at) in enumerate(pairs):
                a(f"v_mfma_f32_16x16x32_bf16 {vr(140+4*i,4)}, {vr(96+4*bt,4)}, {vr(116+4*at,4)}, 0")
            for bt in range(5):
                a(f"v_mfma_f32_16x16x32_bf16 {vr(192+4*bt,4)}, {vr(96+4*bt,4)}, v[136:139], 0")
            for i, (bt, at) in enumerate(pairs):
                m = 0
                for l in range(64):
                    e = 16*at + (l & 15); d = 16*bt + 4*(l >> 4)
                    if e // 20 == d // 20: m |= 1 << l
                a(f"s_mov_b32 exec_lo, {m & 0xffffffff:#x}")
                a(f"s_mov_b32 exec_hi, {m >> 32:#x}")
                a(f"ds_write_b128 v5, {vr(140+4*i,4)} offset:{4*(320*at + 16*bt)}")
            for bt in range(5):
                byx = {}
                for g in range(4):
                    h = (16*bt + 4*g) // 20
                    x, j = divmod(20*h + 20, 16)
                    byx.setdefault(x, 0)
                    byx[x] |= 1 << (16*g + j)
                for x, m in byx.items():
                    a(f"s_mov_b32 exec_lo, {m & 0xffffffff:#x}")
                    a(f"s_mov_b32 exec_hi, {m >> 32:#x}")
                    a(f"ds_write_b128 v5, {vr(192+4*bt,4)} offset:{4*(320*x + 16*bt)}")
            a("s_mov_b64 exec, -1")
            a("s_branch LG1_red")
        else:
            srd(a, 8, P_WS, 64*40*1024, WS_PQ)
            a("v_lshrrev_b32 v5, 1, v3")
            a("v_lshlrev_b32 v5, 9, v5")
            a("v_lshl_add_u32 v5, v2, 4, v5")
            a("v_and_b32 v6, 1, v3")
            a("v_lshl_add_u32 v5, v6, 3, v5")
            a("s_mul_i32 s55, s49, 10240")
            a("s_add_u32 s55, s55, s53")
            for T in range(10):
                for rt in range(2):
                    ac = ACC + 8*T + 4*rt
                    phi2(a, ac, 176); phi2(a, ac+2, 178)
                    a(f"v_cvt_pk_bf16_f32 v{ac}, v{ac}, v{ac+1}")
                    a(f"v_cvt_pk_bf16_f32 v{ac+1}, v{ac+2}, v{ac+3}")
                    a(f"buffer_store_dwordx2 {vr(ac,2)}, v5, s[8:11], s55 offen offset:{(T % 4)*1024 + rt*256}")
                if T % 4 == 3: a("s_add_u32 s55, s55, 4096")
            a("s_endpgm")
    a.label("LG1_load")
    a("s_sub_u32 s52, s3, 4")
    a("s_mul_i32 s53, s52, 320")
    a("v_add_u32 v2, s53, v1")
    a("s_mov_b32 s56, 0")
    for i in range(5):
        a(f"v_add_u32 v3, {64*i}, v2")
        a("v_mul_u32_u24 v4, 3277, v3")
        a("v_lshrrev_b32 v4, 16, v4")
        a("v_mul_u32_u24 v5, 20, v4")
        a("v_sub_u32 v5, v3, v5")
        a("v_lshrrev_b32 v6, 2, v4")
        a("v_and_b32 v6, 2, v6")
        a("v_xor_b32 v5, v5, v6")
        a("v_cmp_le_u32 vcc, 10, v5")
        a("v_mul_u32_u24 v4, 3840, v4")
        a("v_lshl_add_u32 v4, v5, 4, v4")
        a("v_mov_b32 v6, s51")
        a("v_cndmask_b32 v6, 0, v6, vcc")
        a(f"v_add_u32 v{8+i}, v4, v6")
    a("s_waitcnt lgkmcnt(0)")
    srd(a, 4, P_W, 640*3840)
    srd(a, 12, P_DBG, 256)
    a("s_mul_i32 s55, s49, 6720")
    a(f"s_add_u32 s55, s55, {WS_KV}")
    srd(a, 8, P_WS, 6720, "s55")
    a("s_mul_i32 s54, s52, 5120")
    a("s_lshl_b32 s57, s49, 2")
    a("v_mov_b32 v16, 1")
    a("v_mov_b32 v17, 0")
    a("s_add_u32 s58, s63, s52")
    a("s_cmp_lg_u32 s58, 0")
    a("s_cbranch_scc1 LG1_l0")
    a("s_mov_b64 exec, 1")
    a("buffer_atomic_add v16, v17, s[12:15], s57 offen sc0")
    a("s_mov_b64 exec, -1")
    a.label("LG1_l0")
    def dma(ch):
        buf = ch % NBUF
        a(f"s_add_u32 s59, s50, {ch*64*3840}")
        for i in range(5):
            a(f"s_add_u32 m0, s54, {buf*CH_BYTES + 1024*i}")
            a("s_nop 0")
            a(f"buffer_load_dwordx4 v{8+i}, s[4:7], s59 offen lds")
    for ch in range(NBUF): dma(ch)
    issued = NBUF
    for ch in range(10):
        a(f"s_waitcnt vmcnt({5*(issued - ch - 1)})")
        a("s_barrier")
        if ch == 0:
            a("s_cmp_lg_u32 s58, 0")
            a("s_cbranch_scc1 LG1_l1")
            a("v_readfirstlane_b32 s56, v16")
            a("s_nop 0")
            a("s_cmp_eq_u32 s56, 0")
            a("s_cselect_b32 s56, 1, 0")
            a("s_cbranch_scc0 LG1_l1")
            a("v_lshlrev_b32 v18, 4, v1")
            for i in range(4): a(f"v_mov_b32 v{20+i}, 0")
            a("s_mov_b32 s66, 4096")
            for i in range(7):
                so = "0" if i < 4 else "s66"
                a(f"buffer_store_dwordx4 v[20:23], v18, s[8:11], {so} offen offset:{1024*(i%4)} sc0 sc1")
            a.label("LG1_l1")
        if ch >= 2 and issued < 10:
            dma(issued); issued += 1
        if ch == 7:
            a("s_cmp_eq_u32 s56, 0")
            a("s_cbranch_scc1 LG1_l2")
            a("v_mov_b32 v16, 1")
            a("s_mov_b64 exec, 1")
            a("buffer_atomic_add v16, v17, s[12:15], s57 offen offset:128")
            a("s_mov_b64 exec, -1")
            a.label("LG1_l2")
    a("s_cmp_eq_u32 s63, 1")
    a("s_cbranch_scc1 Lend")
    a("s_cmp_lg_u32 s58, 0")
    a("s_cbranch_scc1 LG1_red2")
    a("s_mov_b32 s67, 0")
    a.label("LG1_poll")
    a("s_add_u32 s67, s67, 1")
    a("s_cmp_ge_u32 s67, 0x40000")
    a("s_cbranch_scc1 LG1_red2")
    a("buffer_load_dword v16, v17, s[12:15], s57 offen offset:128 sc0 sc1")
    a("s_waitcnt vmcnt(0)")
    a("v_readfirstlane_b32 s56, v16")
    a("s_nop 0")
    a("s_cmp_eq_u32 s56, 0")
    a("s_cbranch_scc0 LG1_red2")
    a("s_sleep 2")
    a("s_branch LG1_poll")
    a.label("LG1_red")
    a("s_mul_i32 s55, s49, 6720")
    a(f"s_add_u32 s55, s55, {WS_KV}")
    srd(a, 8, P_WS, 6720, "s55")
    a.label("LG1_red2")
    a("v_lshlrev_b32 v2, 2, v0")
    a(f"v_add_u32 v3, {3*CH_BYTES}, v2")
    a("s_waitcnt lgkmcnt(0)")
    a("s_barrier")
    for n in range(4):
        for w in range(4):
            a(f"ds_read_b32 v{8+4*n+w}, v3 offset:{6720*w + 2048*n}")
    a("s_mov_b32 s66, 4096")
    for n in range(4):
        a(f"s_waitcnt lgkmcnt({12-4*n})")
        a(f"v_add_f32 v{8+4*n}, v{8+4*n}, v{9+4*n}")
        a(f"v_add_f32 v{10+4*n}, v{10+4*n}, v{11+4*n}")
        a(f"v_add_f32 v{8+4*n}, v{8+4*n}, v{10+4*n}")
        so = "0" if n < 2 else "s66"
        a(f"buffer_atomic_add_f32 v{8+4*n}, v2, s[8:11], {so} offen offset:{2048*(n%2)}")
    a("s_endpgm")

KVI = 81920
def gen_G2(a):
    a.label("LG2")
    a.vm_reset(); a.lds_reset()
    a("s_and_b32 s46, s44, 3")
    a("s_lshl_b32 s46, s46, 2")
    a("s_and_b32 s47, s45, 3")
    a("s_add_u32 s46, s46, s47")
    a("s_lshr_b32 s47, s44, 2")
    a("s_mul_i32 s47, s47, 5")
    a("s_lshr_b32 s48, s45, 2")
    a("s_add_u32 s47, s47, s48")
    a("s_and_b32 s48, s3, 3")
    a("s_lshr_b32 s49, s3, 2")
    a("v_lshlrev_b32 v2, 4, v1")
    a("s_waitcnt lgkmcnt(0)")
    a("s_mul_i32 s50, s3, 6720")
    a(f"s_add_u32 s51, s50, {WS_KV}")
    srd(a, 8, P_WS, 6720, "s51")
    a("s_mov_b32 s66, 4096")
    KVR = 16
    kt = []
    for i in range(7):
        so = "0" if i < 4 else "s66"
        kt.append(a.vm(f"buffer_load_dwordx4 {vr(KVR+4*i,4)}, v2, s[8:11], {so} offen offset:{1024*(i%4)}"))
    srd(a, 4, P_WS, 64*40*1024, WS_PQ)
    a("s_lshl_b32 s52, s46, 2")
    a("s_add_u32 s52, s52, s48")
    a("s_mul_i32 s53, s52, 40960")
    a("s_mul_i32 s54, s49, 20480")
    a("s_add_u32 s53, s53, s54")
    PQ = 96
    ptok = []
    def loadpq(c):
        ptok.append(a.vm(f"buffer_load_dwordx4 {vr(PQ+4*c,4)}, v2, s[4:7], s53 offen offset:{1024*(c%4)}"))
        if c % 4 == 3: a("s_add_u32 s53, s53, 4096")
    for c in range(5): loadpq(c)
    srd(a, 12, P_WO, 640*1280)
    a("v_lshrrev_b32 v3, 3, v1")
    a("v_and_b32 v4, 7, v1")
    a("v_and_b32 v5, 2, v3")
    a("v_lshlrev_b32 v5, 1, v5")
    a("v_xor_b32 v4, v4, v5")
    a("v_lshlrev_b32 v4, 4, v4")
    for m in range(5):
        a(f"v_add_u32 v5, {8*m}, v3")
        a("v_mul_u32_u24 v6, 26, v5")
        a("v_lshrrev_b32 v6, 8, v6")
        a("v_mul_u32_u24 v6, 10, v6")
        a("v_add_u32 v5, v5, v6")
        a("v_mul_u32_u24 v5, 1280, v5")
        a(f"v_add_u32 v{8+m}, v5, v4")
    a("s_mul_i32 s55, s3, 102400")
    a("s_lshl_b32 s56, s47, 7")
    a("s_add_u32 s55, s55, s56")
    a("s_add_u32 s56, s55, 12800")
    a("s_mul_i32 s57, s3, 10240")
    for i in range(10):
        a(f"s_add_u32 m0, s57, {1024*i}")
        a("s_nop 0")
        wt = a.vm(f"buffer_load_dwordx4 v{8+i//2}, s[12:15], {'s55' if i % 2 == 0 else 's56'} offen lds")
    for c in range(5, 20): loadpq(c)
    a(f"s_add_u32 s50, s50, {KVI}")
    a("v_mov_b32 v44, 0")
    a("v_mov_b32 v45, 0")
    for i in range(4):
        a(f"v_add_u32 v5, {64*i}, v1")
        a("v_min_u32 v5, 251, v5")
        a("v_mul_u32_u24 v6, 21846, v5")
        a("v_lshrrev_b32 v6, 16, v6")
        a("v_mul_u32_u24 v7, 3, v6")
        a("v_sub_u32 v5, v5, v7")
        a("v_mul_u32_u24 v7, 3121, v6")
        a("v_lshrrev_b32 v7, 16, v7")
        a("v_add3_u32 v5, v5, v7, 5")
        a("v_and_b32 v5, 7, v5")
        a("v_mul_u32_u24 v6, 80, v6")
        a("v_lshl_add_u32 v5, v5, 3, v6")
        a("v_add_u32 v5, s50, v5")
        a.lds("ds_write_b64 v5, v[44:45]")
    for i in range(7):
        a(f"v_add_u32 v5, {64*i}, v1")
        a("v_mul_u32_u24 v6, 52429, v5")
        a("v_lshrrev_b32 v6, 18, v6")
        a("v_mul_u32_u24 v7, 3121, v6")
        a("v_lshrrev_b32 v7, 16, v7")
        a("v_add_u32 v5, v5, v7")
        a("v_mul_u32_u24 v6, 40, v6")
        a("v_lshl_add_u32 v5, v5, 3, v6")
        a(f"v_add_u32 v{48+i}, s50, v5")
    a("v_and_b32 v5, 31, v1")
    a("v_lshrrev_b32 v6, 3, v5")
    a("v_lshlrev_b32 v6, 2, v6")
    a("v_and_b32 v7, 3, v5")
    a("v_add_u32 v6, v6, v7")
    a("v_bfe_u32 v7, v5, 2, 1")
    a("v_mul_u32_u24 v7, 10, v7")
    a("v_add_u32 v7, v7, v6")
    a("v_cmp_gt_u32 vcc, 10, v6")
    a("v_lshrrev_b32 v5, 5, v1")
    a("s_mul_i32 s58, s49, 26880")
    a("v_cndmask_b32 v7, 20, v7, vcc")
    a("v_mul_u32_u24 v7, 80, v7")
    a("v_lshl_add_u32 v7, v5, 4, v7")
    a(f"s_add_u32 s58, s58, {KVI}")
    a("v_add_u32 v13, s58, v7")
    a("v_bfe_u32 v6, v1, 2, 2")
    a("v_lshl_add_u32 v7, v5, 3, v6")
    a("v_lshlrev_b32 v7, 7, v7")
    a("v_and_b32 v5, 1, v1")
    a("v_lshl_add_u32 v7, v5, 5, v7")
    a("v_and_b32 v5, 16, v1")
    a("v_add_u32 v7, v7, v5")
    a("v_and_b32 v5, 2, v1")
    a("v_lshl_add_u32 v7, v5, 2, v7")
    a("s_mul_i32 s58, s49, 40960")
    a("v_add_u32 v7, s58, v7")
    a("v_and_b32 v6, 2, v6")
    a("v_lshlrev_b32 v6, 5, v6")
    a("v_add_u32 v14, v7, v6")
    a("v_sub_u32 v15, v7, v6")
    a("v_add_u32 v15, 64, v15")
    a(f"s_mov_b32 s62, {EPS}")
    for i in range(7):
        a.vm_wait(kt[i])
        b = KVR + 4*i
        a(f"v_cvt_pk_bf16_f32 v{b}, v{b}, v{b+1}")
        a(f"v_cvt_pk_bf16_f32 v{b+1}, v{b+2}, v{b+3}")
        if i == 6:
            a("s_mov_b32 exec_hi, 0xf")
        a.lds(f"ds_write_b64 v{48+i}, {vr(b,2)}")
    a("s_mov_b64 exec, -1")
    a.vm_wait(wt)
    a("s_waitcnt lgkmcnt(0)")
    a("s_barrier")
    a.lds_reset()
    DD = 16
    OO = 48
    RC = 88
    ACC = 176
    KF = 208
    WF = 224
    ktok = {}
    def issueK(n):
        hl, cc = divmod(n, 2)
        ktok[n] = a.lds(f"ds_read_b128 {vr(KF+4*(n%4),4)}, v13 offset:{hl*1680 + cc*32}")
    wtok = {}
    def issueW(n):
        st, tau = divmod(n, 2)
        b = WF + 4*(n % 8)
        a.lds(f"ds_read_b64_tr_b16 {vr(b,2)}, v{14+tau} offset:{st*2048}")
        wtok[n] = a.lds(f"ds_read_b64_tr_b16 {vr(b+2,2)}, v{14+tau} offset:{st*2048+512}")
    def omfma(hl):
        d = DD + 16*(hl % 2)
        c0 = (5*hl) >> 2
        for cc in range(2):
            n = 2*hl + cc
            a.vm_wait(ptok[c0+cc])
            a.lds_wait(ktok[n])
            c = "0" if cc == 0 else vr(d, 16)
            a(f"v_mfma_f32_32x32x16_bf16 {vr(d,16)}, {vr(KF+4*(n%4),4)}, {vr(PQ+4*(c0+cc),4)}, {c}")
        for cc in range(2):
            if 2*hl + cc + 4 < 32: issueK(2*hl + cc + 4)
    def ovalu(hl):
        d = DD + 16*(hl % 2)
        o = OO + 20*((hl // 4) % 2) + 5*(hl % 4)
        L = [f"v_add_f32 v{RC}, s62, v{d+10}", f"v_rcp_f32 v{RC}, v{RC}", "s_nop 0"]
        for i in range(5):
            L.append(f"v_pk_mul_f32 {vr(d+2*i,2)}, {vr(d+2*i,2)}, {vr(RC,2)} op_sel_hi:[1,0]")
        for i in range(5):
            L.append(f"v_cvt_pk_bf16_f32 v{o+i}, v{d+2*i}, v{d+2*i+1}")
        return L
    def gmfma(n):
        st, tau = divmod(n, 2)
        Q, m = divmod(st, 5)
        o = OO + 20*(Q % 2) + 4*m
        a.lds_wait(wtok[n])
        c = "0" if st == 0 else vr(ACC+16*tau, 16)
        a(f"v_mfma_f32_32x32x16_bf16 {vr(ACC+16*tau,16)}, {vr(WF+4*(n%8),4)}, {vr(o,4)}, {c}")
        if n + 4 < 40: issueW(n + 4)
    for n in range(4): issueK(n)
    for n in range(4): issueW(n)
    gn = 0
    for hl in range(17):
        if hl < 16: omfma(hl)
        ng = 0
        avail = 10 * ((hl - 1) // 4) if hl >= 1 else 0
        want = [3, 3, 2, 2][(hl - 1) % 4] if hl >= 1 else 0
        while gn < avail and ng < want: gmfma(gn); gn += 1; ng += 1
        if hl >= 1:
            if ng < 2: a("s_nop 7")
            if hl == 16: a("s_nop 3")
            for l in ovalu(hl - 1): a(l)
    a("s_nop 1")
    while gn < 40: gmfma(gn); gn += 1
    a("s_lshl_b32 s50, s3, 12")
    a("v_add_u32 v3, s50, v2")
    a("s_xor_b32 s51, s50, 16384")
    a("v_add_u32 v4, s51, v2")
    srd(a, 8, P_OUT, 2048*2560)
    a("v_and_b32 v5, 31, v1")
    a("v_mul_u32_u24 v5, 2560, v5")
    a("v_lshrrev_b32 v6, 5, v1")
    a("v_lshl_add_u32 v5, v6, 5, v5")
    a("s_mul_i32 s53, s52, 81920")
    a("s_lshl_b32 s54, s47, 7")
    a("s_add_u32 s53, s53, s54")
    a("s_lshl_b32 s54, s49, 6")
    a("s_add_u32 s53, s53, s54")
    a("s_add_u32 s53, s53, 1280")
    a("s_barrier")
    a("s_cmp_eq_u32 s49, 0")
    a("s_cbranch_scc1 LG2_x0")
    for i in range(4): a(f"ds_write_b128 v3, {vr(ACC+4*i,4)} offset:{1024*i}")
    for i in range(16): a(f"v_mov_b32 v{16+i}, v{ACC+16+i}")
    a("s_branch LG2_x1")
    a.label("LG2_x0")
    for i in range(4): a(f"ds_write_b128 v3, {vr(ACC+16+4*i,4)} offset:{1024*i}")
    for i in range(16): a(f"v_mov_b32 v{16+i}, v{ACC+i}")
    a.label("LG2_x1")
    a("s_waitcnt lgkmcnt(0)")
    a("s_barrier")
    for i in range(4): a(f"ds_read_b128 {vr(32+4*i,4)}, v4 offset:{1024*i}")
    for i in range(4):
        a(f"s_waitcnt lgkmcnt({3-i})")
        a(f"v_pk_add_f32 {vr(16+4*i,2)}, {vr(16+4*i,2)}, {vr(32+4*i,2)}")
        a(f"v_pk_add_f32 {vr(18+4*i,2)}, {vr(18+4*i,2)}, {vr(34+4*i,2)}")
        a(f"v_cvt_pk_bf16_f32 v{48+2*i}, v{16+4*i}, v{17+4*i}")
        a(f"v_cvt_pk_bf16_f32 v{49+2*i}, v{18+4*i}, v{19+4*i}")
        if i % 2 == 1:
            a(f"buffer_store_dwordx4 {vr(48+4*(i//2),4)}, v5, s[8:11], s53 offen offset:{16*(i//2)}")
    a("s_endpgm")

def kd(name):
    return f""".p2align 6
.amdhsa_kernel {name}
  .amdhsa_next_free_vgpr 256
  .amdhsa_next_free_sgpr 72
  .amdhsa_accum_offset 256
  .amdhsa_group_segment_fixed_size 0
  .amdhsa_kernarg_size 104
  .amdhsa_user_sgpr_count 2
  .amdhsa_user_sgpr_kernarg_segment_ptr 1
  .amdhsa_system_sgpr_workgroup_id_x 1
.end_amdhsa_kernel
"""

def main(out):
    hdr = open(f"cdna_kernels/{NAME}.s.ref").read().split("; Override launch")[0]
    a = Asm()
    a(".text")
    a.label("Lcode_start")
    a(".globl k1_kernel\n.p2align 8\n.type k1_kernel,@function")
    a.label("k1_kernel")
    prologue(a, "1")
    a("s_cmp_lt_u32 s45, 24")
    a("s_cbranch_scc1 LG1")
    a("s_lshl_b32 s42, s44, 5")
    a("s_sub_u32 s46, s45, 24")
    a("s_lshl_b32 s46, s46, 2")
    a("s_add_u32 s42, s42, s46")
    a("s_branch LA")
    gen_G1(a)
    a.label("Lend")
    a("s_endpgm")
    gen_A(a)
    a(".globl k2_kernel\n.p2align 8\n.type k2_kernel,@function")
    a.label("k2_kernel")
    prologue(a, "2")
    a("s_cmp_lt_u32 s45, 20")
    a("s_cbranch_scc1 LG2")
    a("s_mul_i32 s42, s44, 48")
    a("s_sub_u32 s46, s45, 20")
    a("s_lshl_b32 s46, s46, 2")
    a("s_add_u32 s42, s42, s46")
    a("s_add_u32 s42, s42, 256")
    a("s_branch LA")
    gen_G2(a)
    a.label("Lcode_end")
    for m in check_hazards(a.lines): print(m)
    txt = hdr
    txt += f"; @launch kernel=k1_kernel grid=(256,1,1) block=(512,1,1) lds={LDS_BYTES}\n"
    txt += f"; @launch kernel=k2_kernel grid=(256,1,1) block=(512,1,1) lds={LDS_BYTES}\n"
    txt += '.amdgcn_target "amdgcn-amd-amdhsa--gfx950"\n'
    txt += a.text()
    txt += '.section .rodata,"a"\n' + kd("k1_kernel") + kd("k2_kernel")
    open(out, "w").write(txt)
main(sys.argv[1] if len(sys.argv) > 1 else f"cdna_kernels/{NAME}.s")
```

```python
import sys, struct
from asmlib import *
NAME = "concat_heads__ssm_conv_s4d__linear_attn_block__prompt"
def f2u(x): return struct.unpack("<I", struct.pack("<f", x))[0]
LOG2E = f2u(1.4426950408889634)
INV2PI = f2u(0.15915494309189535)
EPS = f2u(1e-6)
LDS_BYTES = 147456
WS_PQ = 0
WS_KV = 0x300000
P_U, P_LA, P_AI, P_CR, P_CI, P_LDT, P_DSK, P_X = [16 + 2*i for i in range(8)]
P_W, P_WO, P_OUT, P_DBG = 32, 34, 36, 38
P_WS = 40
S_W = 3

def srd(a, d, p, size, off=None):
    if off is None:
        a(f"s_mov_b32 s{d}, s{p}")
        a(f"s_mov_b32 s{d+1}, s{p+1}")
    else:
        a(f"s_add_u32 s{d}, s{p}, {off}")
        a(f"s_addc_u32 s{d+1}, s{p+1}, 0")
    a(f"s_mov_b32 s{d+2}, {size}")
    a(f"s_mov_b32 s{d+3}, 0x20000")

def prologue(a, tag):
    a("s_cmp_ge_u32 s2, 256")
    a("s_cbranch_scc1 Lend")
    if STAMPS:
        for i in range(1, 8): a(f"s_mov_b32 s{72+2*i}, 0")
        a(f"s_mov_b32 s43, {0 if tag == '1' else 0x40000}")
    stamp(a, 0)
    a("s_load_dwordx16 s[16:31], s[0:1], 0")
    a("s_load_dwordx8 s[32:39], s[0:1], 64")
    a("s_load_dwordx2 s[40:41], s[0:1], 96")
    a("v_lshrrev_b32 v2, 6, v0")
    a("v_and_b32 v1, 63, v0")
    a("s_cmp_ge_u32 s2, 16")
    a(f"s_cbranch_scc1 Lnopf_{tag}")
    a("s_getpc_b64 s[64:65]")
    a.label(f"Lpc_{tag}")
    a(f"s_sub_u32 s64, s64, Lpc_{tag}-Lcode_start")
    a("s_subb_u32 s65, s65, 0")
    a("v_lshlrev_b32 v3, 7, v0")
    a("v_min_u32 v3, Lcode_end-Lcode_start-4, v3")
    a("global_load_dword v255, v3, s[64:65]")
    a.label(f"Lnopf_{tag}")
    a(f"v_readfirstlane_b32 s{S_W}, v2")
    a("s_and_b32 s44, s2, 7")
    a("s_lshr_b32 s45, s2, 3")

STAMPS = False
WS_ST = 0x380000
def stamp(a, idx, waves=None):
    if not STAMPS: return
    a(f"s_memrealtime s[{72+2*idx}:{73+2*idx}]")
    if idx > 0:
        a("s_waitcnt lgkmcnt(0)")
        a.lds_done = a.lds_issued
def stamp_flush(a, kern, n=8):
    if not STAMPS: return
    a("s_waitcnt vmcnt(0)")
    a(f"s_memrealtime s[{72+2*(n-1)}:{73+2*(n-1)}]")
    a("s_waitcnt lgkmcnt(0)")
    a("s_lshl_b32 s88, s2, 3")
    a("s_add_u32 s88, s88, s3")
    a("s_lshl_b32 s88, s88, 6")
    a("s_add_u32 s88, s88, s43")
    a(f"s_add_u32 s88, s88, {WS_ST}")
    a("s_add_u32 s90, s40, s88")
    a("s_addc_u32 s91, s41, 0")
    a("v_mov_b32 v250, 0")
    for i in range(n):
        a(f"v_mov_b32 v251, s{72+2*i}")
        a(f"global_store_dword v250, v251, s[90:91] offset:{4*i}")

def cmul(a, d, x, w):
    a(f"v_pk_mul_f32 {vr(d,2)}, {vr(x,2)}, {vr(w,2)} op_sel_hi:[1,0]")
    a(f"v_pk_fma_f32 {vr(d,2)}, {vr(x,2)}, {vr(w,2)}, {vr(d,2)} op_sel:[1,1,0] op_sel_hi:[0,1,1] neg_lo:[1,0,0]")

U_OFF, U_STR = 0, 1152
TAB_OFF, TAB_STR, ROW = 18432, 15504, 272
KX_REL, YS_REL = 4096, 8448
def gen_A(a):
    a.label("LA")
    a.lds_reset(); a.vm_reset()
    a("s_and_b32 s46, s3, 3")
    a("s_lshr_b32 s47, s3, 2")
    a("s_add_u32 s48, s42, s46")
    a("s_waitcnt lgkmcnt(0)")
    stamp(a, 1)
    a("s_lshl_b32 s49, s48, 8")
    a("s_lshl_b32 s50, s47, 7")
    a("s_add_u32 s49, s49, s50")
    a("v_lshlrev_b32 v4, 1, v1")
    a("v_add_u32 v4, s49, v4")
    a("s_lshl_b32 s50, s48, 1")
    a("v_mov_b32 v5, s50")
    a.vm(f"global_load_ushort v20, v5, s[{P_LDT}:{P_LDT+1}]")
    a.vm(f"global_load_ushort v16, v4, s[{P_LA}:{P_LA+1}]")
    a.vm(f"global_load_ushort v17, v4, s[{P_AI}:{P_AI+1}]")
    a.vm(f"global_load_ushort v18, v4, s[{P_CR}:{P_CR+1}]")
    a.vm(f"global_load_ushort v19, v4, s[{P_CI}:{P_CI+1}]")
    tpar = a.vm(f"global_load_ushort v21, v5, s[{P_DSK}:{P_DSK+1}]")
    srd(a, 4, P_U, 2048*1280)
    a("s_lshl_b32 s50, s47, 6")
    a("v_add_u32 v6, s50, v1")
    a("v_mul_u32_u24 v7, 20480, v6")
    a("s_mul_i32 s50, s46, 1280")
    a("s_lshl_b32 s51, s42, 1")
    a("s_add_u32 s50, s50, s51")
    for t in range(4):
        tu = a.vm(f"buffer_load_dwordx2 {vr(8+2*t,2)}, v7, s[4:7], s50 offen")
        if t < 3: a("s_add_u32 s50, s50, 5120")
    a("v_lshrrev_b32 v2, 5, v0")
    a(f"v_mul_u32_u24 v2, {U_STR}, v2")
    a("v_and_b32 v3, 31, v0")
    a("v_lshl_add_u32 v2, v3, 2, v2")
    a("v_mov_b32 v3, 0")
    a.lds(f"ds_write_b32 v2, v3 offset:{U_OFF}")
    a(f"s_mul_i32 s50, s46, {U_STR}")
    a("v_lshlrev_b32 v6, 3, v6")
    a("v_add_u32 v6, s50, v6")
    a(f"s_mul_i32 s52, s3, {TAB_STR}")
    a(f"s_add_u32 s52, s52, {TAB_OFF}")
    a("s_mov_b32 m0, s52")
    a(f"s_mov_b32 s53, {LOG2E}")
    a(f"s_mov_b32 s54, {INV2PI}")
    a("s_mov_b32 s55, 0x43000000")
    a("v_and_b32 v22, 15, v1")
    a("v_lshrrev_b32 v23, 4, v1")
    a(f"v_mul_u32_u24 v54, {ROW}, v22")
    a("v_lshl_add_u32 v54, v23, 4, v54")
    a("v_add_u32 v54, s52, v54")
    a.vm_wait(tpar)
    stamp(a, 2)
    for r in (16, 17, 18, 19, 20, 21): a(f"v_lshlrev_b32 v{r}, 16, v{r}")
    a("v_mul_f32 v20, s53, v20")
    a("v_mul_f32 v16, s53, v16")
    a("v_exp_f32 v20, v20")
    a("v_exp_f32 v16, v16")
    a("s_nop 0")
    a("v_cvt_pk_bf16_f32 v16, v20, v16")
    a("v_lshlrev_b32 v20, 16, v16")
    a("v_and_b32 v16, 0xffff0000, v16")
    a("v_mul_f32 v16, v16, v20")
    a("v_mul_f32 v17, v17, v20")
    a("v_mul_f32_e64 v16, -v16, s53")
    a("v_mul_f32 v17, s54, v17")
    a("v_add_f32 v20, v20, v20")
    a("v_mul_f32 v34, v18, v20")
    a("v_mul_f32 v35, v19, v20")
    a("v_mul_f32 v18, s55, v16")
    a("v_mul_f32 v19, s55, v17")
    a("v_fract_f32 v17, v17")
    a("v_fract_f32 v19, v19")
    a("v_exp_f32 v16, v16")
    a("v_exp_f32 v18, v18")
    a("v_cos_f32 v24, v17")
    a("v_sin_f32 v25, v17")
    a("v_cos_f32 v32, v19")
    a("v_sin_f32 v33, v19")
    a("v_mul_f32 v24, v24, v16")
    a("v_mul_f32 v25, v25, v16")
    a("v_mul_f32 v32, v32, v18")
    a("v_mul_f32 v33, v33, v18")
    W1, W2, W4, W8, W128 = 24, 26, 28, 30, 32
    cmul(a, W2, W1, W1); cmul(a, W4, W2, W2); cmul(a, W8, W4, W4)
    a("v_xor_b32 v31, 0x80000000, v31")
    tmp = [46]
    def put(row, x):
        t = tmp[0]; tmp[0] = 46 + (t - 46 + 1) % 8
        a(f"v_cvt_pk_bf16_f32 v{t}, v{x}, v{x+1}")
        a.lds(f"ds_write_addtid_b32 v{t} offset:{row*ROW}")
    a("v_mov_b32 v53, 0x3f80")
    a.lds(f"ds_write_addtid_b32 v53 offset:{41*ROW}")
    put(42, W8)
    y = W8
    for j in range(2, 16):
        d = 42 + 2*(j & 1)
        cmul(a, d, y, W8); put(41 + j, d); y = d
    g = 34; row = 0
    for h in range(17):
        put(row, g); row += 1
        if h < 2: steps, w = 7, W1
        elif h < 4: steps, w = 3, W2
        elif h < 8: steps, w = 1, W4
        else: steps = 0
        x = g
        for s in range(steps):
            d = 38 + 2*(s & 1)
            cmul(a, d, x, w); put(row, d); row += 1; x = d
        if h < 16:
            gn = 34 + (36 - g) + 0 if False else (36 if g == 34 else 34)
            cmul(a, gn, g, W128); g = gn
    assert row == 41
    stamp(a, 3)
    toks = {}
    for k in range(4):
        toks[('y', k)] = a.lds(f"ds_read_b128 {vr(112+4*k,4)}, v54 offset:{41*ROW + 64*k}")
        for t in range(3):
            toks[(t, k)] = a.lds(f"ds_read_b128 {vr(64+16*t+4*k,4)}, v54 offset:{16*t*ROW + 64*k}")
    a("s_mov_b32 s56, 0x05040100")
    a("s_mov_b32 s57, 0x07060302")
    a.vm_wait(tu)
    for ch in range(4):
        sel = "s56" if ch % 2 == 0 else "s57"
        dw = ch // 2
        a(f"v_perm_b32 v{56+2*ch}, v{10+dw}, v{8+dw}, {sel}")
        a(f"v_perm_b32 v{57+2*ch}, v{14+dw}, v{12+dw}, {sel}")
    a("v_lshrrev_b32 v2, 1, v23")
    a("v_and_b32 v3, 1, v23")
    a("v_lshlrev_b32 v8, 9, v2")
    a("v_lshl_add_u32 v8, v3, 4, v8")
    a("v_lshl_add_u32 v8, v22, 5, v8")
    a("v_add_u32 v8, s52, v8")
    a("v_sub_u32 v3, 4, v2")
    a("v_lshlrev_b32 v9, v3, v22")
    a("v_lshl_add_u32 v9, v23, 8, v9")
    a("v_add_u32 v9, s52, v9")
    a("v_mul_u32_u24 v3, 120, v2")
    a("v_add3_u32 v10, v9, v3, 8")
    a("v_lshlrev_b32 v11, 8, v23")
    a("v_lshl_add_u32 v11, v22, 2, v11")
    a("v_add_u32 v11, s52, v11")
    a("v_add_u32 v11, 2048, v11")
    for k in range(4):
        for t in range(3):
            a.lds_wait(toks[(t, k)])
            c = "0" if k == 0 else vr(128+4*t, 4)
            a(f"v_mfma_f32_16x16x32_bf16 {vr(128+4*t,4)}, {vr(64+16*t+4*k,4)}, {vr(112+4*k,4)}, {c}")
    for ch in range(4):
        a.lds(f"ds_write_b64 v6, {vr(56+2*ch,2)} offset:{U_OFF + 4*ch*U_STR + 128}")
    a("s_nop 3")
    a.lds(f"ds_write_b128 v8, {vr(128,4)}")
    a.lds(f"ds_write_b64 v9, {vr(132,2)} offset:1024")
    a.lds(f"ds_write_b64 v10, {vr(134,2)} offset:1024")
    a.lds(f"ds_write2_b32 v11, v136, v137 offset0:0 offset1:16")
    a.lds(f"ds_write2_b32 v11, v138, v139 offset0:32 offset1:48")
    a("s_waitcnt lgkmcnt(0)")
    a("s_barrier")
    stamp(a, 4)
    a.lds_reset()
    a("s_cmp_ge_u32 s3, 4")
    a("s_cbranch_scc1 LA_final")
    D2 = 4*TAB_STR
    a("v_lshlrev_b32 v2, 4, v1")
    a("v_add_u32 v2, s52, v2")
    a("v_lshlrev_b32 v3, 3, v1")
    a("v_add_u32 v3, s52, v3")
    t0 = a.lds(f"ds_read_b128 v[8:11], v2")
    t0 = a.lds(f"ds_read_b128 v[12:15], v2 offset:{D2}")
    tr = []
    for R, base in enumerate((256, 384, 512)):
        b = 24 + 8*R
        a.lds(f"ds_read_b64 {vr(b,2)}, v3 offset:{4*base}")
        a.lds(f"ds_read_b32 v{b+2}, v3 offset:{4*base+8}")
        a.lds(f"ds_read_b64 {vr(b+4,2)}, v3 offset:{4*base+D2}")
        tr.append(a.lds(f"ds_read_b32 v{b+6}, v3 offset:{4*base+8+D2}"))
    a("v_cmp_eq_u32 vcc, 0, v1")
    a("v_mov_b32 v4, 0")
    a("v_and_b32 v5, 7, v1")
    a("v_lshlrev_b32 v5, 2, v5")
    a("v_add_u32 v5, s52, v5")
    a("v_cndmask_b32 v21, v4, v21, vcc")
    a.lds(f"ds_write_b32 v5, v4 offset:{KX_REL}")
    a("v_lshlrev_b32 v7, 5, v1")
    a("v_add_u32 v7, s52, v7")
    a.lds_wait(t0)
    for i in range(4): a(f"v_add_f32 v{8+i}, v{8+i}, v{12+i}")
    a("v_add_f32 v8, v8, v21")
    a("v_cvt_pk_bf16_f32 v12, v8, v9")
    a("v_cvt_pk_bf16_f32 v13, v10, v11")
    a.lds(f"ds_write_b64 v3, v[12:13] offset:{KX_REL+32}")
    for R in range(3):
        b = 24 + 8*R
        a.lds_wait(tr[R])
        for i in range(3): a(f"v_add_f32 v{b+i}, v{b+i}, v{b+4+i}")
        A_, B_, C_ = b, b+1, b+2
        pats = [[(A_,A_),(B_,C_)], [(A_,A_),(A_,B_),(B_,B_),(C_,C_)],
                [(A_,A_),(A_,A_),(A_,B_),(B_,B_),(B_,B_),(B_,B_),(C_,C_),(C_,C_)]][R]
        o = [48, 52, 56][R]
        for i, (x, y) in enumerate(pats): a(f"v_cvt_pk_bf16_f32 v{o+i}, v{x}, v{y}")
        if R == 0: a.lds(f"ds_write_b64 v3, v[48:49] offset:{KX_REL+32+512}")
        elif R == 1: a.lds(f"ds_write_b128 v2, v[52:55] offset:{KX_REL+32+1024}")
        else:
            a.lds(f"ds_write_b128 v7, v[56:59] offset:{KX_REL+32+2048}")
            a.lds(f"ds_write_b128 v7, v[60:63] offset:{KX_REL+32+2048+16}")
    a("v_and_b32 v4, 3, v1")
    a("v_bfe_u32 v5, v1, 2, 2")
    a("v_sub_u32 v4, v4, v5")
    a("v_lshlrev_b32 v5, 3, v23")
    a("v_sub_u32 v4, v4, v5")
    a("v_add_u32 v4, 28, v4")
    a("v_lshlrev_b32 v4, 3, v4")
    a("v_add_u32 v4, s52, v4")
    a(f"s_mul_i32 s50, s3, {4*U_STR}")
    a("v_lshlrev_b32 v5, 3, v22")
    a("v_lshl_add_u32 v5, v23, 4, v5")
    a("v_add_u32 v5, s50, v5")
    a("v_subrev_u32 v6, 16, v1")
    a("v_add_u32 v7, 47, v1")
    a("v_cmp_gt_u32 vcc, 16, v1")
    a("s_mov_b32 s58, 0")
    a("s_mov_b32 s59, 0x80000000")
    a("v_cndmask_b32 v6, v6, v7, vcc")
    a("v_cmp_eq_u32 vcc, 0, v1")
    a("v_mov_b32 v7, 63")
    a("v_mov_b32 v16, 0")
    a("v_cndmask_b32 v6, v6, v7, vcc")
    a("v_lshlrev_b32 v6, 2, v6")
    a("v_mov_b32 v17, 0")
    a("v_mov_b32 v18, 0")
    AOP, ACC, BR, NB = 64, 128, 24, 10
    seq = [(r, rho) for r in range(-1, 15) for rho in range(4)]
    btok = {}
    def issueB(n):
        r, rho = seq[n]; b = BR + 4*(n % NB)
        off = U_OFF + rho*U_STR + 8 + 64*(r+1)
        a.lds(f"ds_read_b64 {vr(b,2)}, v5 offset:{off}")
        btok[n] = a.lds(f"ds_read_b64 {vr(b+2,2)}, v5 offset:{off+8}")
    atok = {}
    def issueA(s):
        a.lds(f"ds_read_b64_tr_b16 {vr(AOP+4*s,2)}, v4 offset:{KX_REL + 256*s + 32}")
        atok[s] = a.lds(f"ds_read_b64_tr_b16 {vr(AOP+4*s+2,2)}, v4 offset:{KX_REL + 256*s}")
    a("s_waitcnt lgkmcnt(0)")
    stamp(a, 5)
    a.lds_reset()
    issueB(0)
    for s in range(1, 16, 2): issueA(s)
    issueB(1); issueB(2); issueB(3)
    pendA = list(range(0, 16, 2))
    PD = 4
    nextB = 4
    acc = lambda rho, q, i=None: (ACC + 32*rho + 4*q) + (0 if i is None else i)
    epi = []
    def make_epi(q):
        C = lambda rho, i: f"v{acc(rho, q, i)}"
        prev = (lambda i: f"v{16+i}") if q == 0 else (lambda i: f"v{[acc(1,q-1,3), acc(2,q-1,3), acc(3,q-1,3)][i]}")
        L = []
        L.append(lambda: a(f"v_add_f32 {C(1,3)}, {C(1,3)}, {C(2,2)}"))
        L.append(lambda: a(f"v_add_f32 {C(2,3)}, {C(2,3)}, {C(3,2)}"))
        L.append(lambda: a(f"v_add_f32 {C(1,3)}, {C(1,3)}, {C(3,1)}"))
        L.append(lambda: a(f"v_cndmask_b32 v10, {C(3,3)}, {prev(2)}, s[58:59]"))
        L.append(lambda: a(f"v_cndmask_b32 v9, {C(2,3)}, {prev(1)}, s[58:59]"))
        L.append(lambda: a(f"v_cndmask_b32 v8, {C(1,3)}, {prev(0)}, s[58:59]"))
        tk = {}
        for i in (2, 1, 0):
            L.append(lambda i=i: tk.__setitem__(i, a.lds(f"ds_bpermute_b32 v{12+i}, v6, v{8+i}")))
        L.append(lambda: a(f"v_add_f32 {C(0,1)}, {C(0,1)}, {C(1,0)}"))
        L.append(lambda: a(f"v_add_f32 {C(0,2)}, {C(0,2)}, {C(1,1)}"))
        L.append(lambda: a(f"v_add_f32 {C(0,3)}, {C(0,3)}, {C(1,2)}"))
        L.append(lambda: a(f"v_add_f32 {C(0,2)}, {C(0,2)}, {C(2,0)}"))
        L.append(lambda: a(f"v_add_f32 {C(0,3)}, {C(0,3)}, {C(2,1)}"))
        L.append(lambda: a(f"v_add_f32 {C(0,3)}, {C(0,3)}, {C(3,0)}"))
        L.append(None); L.append(None); L.append(None); L.append(None)
        def fin(i):
            a.lds_wait(tk[i]); a(f"v_add_f32 {C(0,i)}, {C(0,i)}, v{12+i}")
        for i in (2, 1, 0): L.append(lambda i=i: fin(i))
        L.append(lambda: a(f"v_cvt_pk_bf16_f32 {C(1,1)}, {C(0,2)}, {C(0,3)}"))
        L.append(lambda: a(f"v_cvt_pk_bf16_f32 {C(1,0)}, {C(0,0)}, {C(0,1)}"))
        L.append(lambda: a.lds(f"ds_write_b64 v3, {vr(acc(1,q),2)} offset:{YS_REL + 512*q}"))
        return L
    delay = 0
    for n, (r, rho) in enumerate(seq):
        b = BR + 4*(n % NB)
        qs = [q for q in range(8) if 0 <= 2*q - r <= 15]
        a.lds_wait(btok[n])
        for qi, q in enumerate(qs):
            s = 2*q - r
            a.lds_wait(atok[s])
            c = "0" if r == -1 else vr(acc(rho, q), 4)
            a(f"v_mfma_f32_16x16x32_bf16 {vr(acc(rho,q),4)}, {vr(AOP+4*s,4)}, {vr(b,4)}, {c}")
            if qi == 0:
                while nextB < len(seq) and nextB <= n + (PD if r < 8 else 7): issueB(nextB); nextB += 1
            elif pendA and n >= 1: issueA(pendA.pop(0))
            if delay > 0: delay -= 1
            else:
                for _ in range(2):
                    if epi:
                        f = epi.pop(0)
                        if f: f()
        if rho == 3 and r >= 0 and r % 2 == 0:
            if not epi: delay = 8
            else: epi.extend([None]*8)
            epi.extend(make_epi(r // 2))
    a("s_nop 7")
    for f in epi:
        if f: f()
    a("s_waitcnt lgkmcnt(0)")
    stamp(a, 6)
    a.label("LA_final")
    a("v_and_b32 v4, 3, v1")
    a("v_bfe_u32 v5, v1, 2, 2")
    a(f"v_mul_u32_u24 v5, {TAB_STR}, v5")
    a("v_lshl_add_u32 v5, v4, 7, v5")
    a("v_lshl_add_u32 v5, v23, 3, v5")
    a("s_lshl_b32 s50, s3, 9")
    a("v_add_u32 v5, s50, v5")
    srd(a, 8, P_OUT, 2048*2560)
    a("v_mul_u32_u24 v7, 2560, v1")
    a("s_mul_i32 s50, s3, 655360")
    a("s_lshl_b32 s51, s42, 1")
    a("s_add_u32 s50, s50, s51")
    a("s_barrier")
    for n in range(4):
        a(f"ds_read_b64_tr_b16 {vr(8+2*n,2)}, v5 offset:{TAB_OFF + YS_REL + 32*n}")
    for n in range(4):
        a(f"s_waitcnt lgkmcnt({3-n})")
        a(f"buffer_store_dwordx2 {vr(8+2*n,2)}, v7, s[8:11], s50 offen")
        if n < 3: a("s_add_u32 s50, s50, 163840")
    stamp_flush(a, 0)
    a("s_endpgm")

CH_W = 20480
CH_BYTES = 36864
NBUF = 4
def phi2(a, x, t):
    a(f"v_pk_mul_f32 {vr(t,2)}, {vr(x,2)}, s[60:61]")
    a(f"v_max_f32_e64 v{x}, s62, v{x}")
    a(f"v_exp_f32 v{t}, v{t} clamp")
    a(f"v_exp_f32 v{t+1}, v{t+1} clamp")
    a(f"v_max_f32_e64 v{x+1}, s62, v{x+1}")
    a(f"v_pk_add_f32 {vr(x,2)}, {vr(x,2)}, {vr(t,2)}")

RED_OFF = 2*CH_BYTES
def gen_G1(a):
    a.label("LG1")
    a("s_and_b32 s46, s44, 3")
    a("s_lshl_b32 s46, s46, 2")
    a("s_and_b32 s47, s45, 3")
    a("s_add_u32 s46, s46, s47")
    a("s_lshr_b32 s47, s45, 2")
    a("s_lshr_b32 s48, s44, 2")
    a("s_cmp_ge_u32 s47, 4")
    a("s_cselect_b32 s63, 1, 0")
    a("s_cbranch_scc1 LG1_q0")
    a("s_lshl_b32 s49, s48, 2")
    a("s_add_u32 s49, s49, s47")
    a("s_mul_i32 s50, s49, 160")
    a("s_add_u32 s50, s50, 1280")
    a("s_mov_b32 s51, 1120")
    a("s_branch LG1_c")
    a.label("LG1_q0")
    a("s_lshl_b32 s49, s48, 1")
    a("s_add_u32 s49, s49, s47")
    a("s_sub_u32 s49, s49, 4")
    a("s_mul_i32 s50, s49, 320")
    a("s_mov_b32 s51, 0")
    a.label("LG1_c")
    a("s_cmp_ge_u32 s3, 4")
    a("s_cbranch_scc1 LG1_load")
    a("v_and_b32 v2, 15, v1")
    a("v_lshrrev_b32 v3, 4, v1")
    a("s_lshl_b32 s52, s46, 2")
    a("s_add_u32 s52, s52, s3")
    a("s_mul_i32 s53, s52, 40960")
    ACC, AR, BR, NBR, PD = 16, 96, 112, 10, 6
    a("v_bfe_u32 v5, v1, 2, 2")
    a("v_lshl_add_u32 v5, v3, 3, v5")
    a("v_mul_u32_u24 v5, 320, v5")
    a("v_and_b32 v6, 3, v1")
    a("v_lshl_add_u32 v5, v6, 3, v5")
    a("v_and_b32 v6, 1, v3")
    a("v_lshlrev_b32 v6, 5, v6")
    a("v_add_u32 v4, v5, v6")
    a("v_sub_u32 v5, v5, v6")
    a("v_add_u32 v5, 32, v5")
    a("v_lshrrev_b32 v6, 1, v2")
    a("v_xor_b32 v6, v6, v3")
    a("v_lshlrev_b32 v6, 4, v6")
    a("v_lshl_add_u32 v6, v2, 7, v6")
    a("s_lshl_b32 s54, s3, 12")
    a(f"s_add_u32 s54, s54, {CH_W}")
    a("v_add_u32 v6, s54, v6")
    a("v_xor_b32 v7, 64, v6")
    for i in range(4): a(f"v_mov_b32 v{8+i}, v{4+i}")
    for i in range(80): a(f"v_mov_b32 v{ACC+i}, 0")
    a(f"s_mov_b32 s60, {LOG2E}")
    a(f"s_mov_b32 s61, {LOG2E}")
    a(f"s_mov_b32 s62, {EPS}")
    a("s_mov_b32 s55, 0")
    a("s_mov_b32 s56, 0")
    a("s_waitcnt lgkmcnt(0)")
    stamp(a, 1)
    def rdB(n):
        ks, T = divmod(n, 10)
        off = ks*32*320 + (T & ~1)*32
        b = BR + 4*(n % NBR)
        a(f"ds_read_b64_tr_b16 {vr(b,2)}, v{8+(T&1)} offset:{off}")
        a(f"ds_read_b64_tr_b16 {vr(b+2,2)}, v{8+(T&1)} offset:{off+1280}")
    def rdA(ks):
        a(f"ds_read_b128 {vr(AR+8*ks,4)}, v{10+ks}")
        a(f"ds_read_b128 {vr(AR+8*ks+4,4)}, v{10+ks} offset:2048")
    a("s_barrier")
    rdA(0)
    for n in range(PD): rdB(n)
    stamp(a, 2)
    a("s_cmp_eq_u32 s63, 1")
    a("s_cbranch_scc1 LG1_qloop")
    for variant in ("kv", "q"):
        a(".p2align 3")
        a.label(f"LG1_{variant}loop")
        for n in range(20):
            ks, T = divmod(n, 10)
            cnt = 2*(PD-1)
            if (n % 10) > 10 - PD: cnt += 2
            a(f"s_waitcnt lgkmcnt({cnt})")
            b = BR + 4*(n % NBR)
            for rt in range(2):
                ac = ACC + 8*T + 4*rt
                ab = AR + 8*ks + 4*rt
                if variant == "kv":
                    a(f"v_mfma_f32_16x16x32_bf16 {vr(ac,4)}, {vr(ab,4)}, {vr(b,4)}, {vr(ac,4)}")
                else:
                    a(f"v_mfma_f32_16x16x32_bf16 {vr(ac,4)}, {vr(b,4)}, {vr(ab,4)}, {vr(ac,4)}")
                if rt == 0:
                    if n == 10 - PD: rdA(1)
                    if n == 20 - PD:
                        a(f"s_add_u32 s56, s56, {CH_BYTES}")
                        a(f"s_cmp_eq_u32 s56, {NBUF*CH_BYTES}")
                        a("s_cselect_b32 s56, 0, s56")
                        a("s_add_u32 s55, s55, 1")
                        for i in range(4): a(f"v_add_u32 v{8+i}, s56, v{4+i}")
                        a("s_barrier")
                        rdA(0)
                    rdB((n + PD) % 20)
        a("s_cmp_lt_u32 s55, 10")
        a(f"s_cbranch_scc1 LG1_{variant}loop")
        a("s_waitcnt lgkmcnt(0)")
        stamp(a, 4)
        if variant == "kv":
            for T in range(5):
                for rt in range(2):
                    ac = ACC + 8*T + 4*rt
                    phi2(a, ac, 176); phi2(a, ac+2, 178)
                    a(f"v_cvt_pk_bf16_f32 v{96+4*T+2*rt}, v{ac}, v{ac+1}")
                    a(f"v_cvt_pk_bf16_f32 v{96+4*T+2*rt+1}, v{ac+2}, v{ac+3}")
            for T in range(5, 10):
                for rt in range(2):
                    ac = ACC + 8*T + 4*rt
                    a(f"v_cvt_pk_bf16_f32 v{96+4*T+2*rt}, v{ac}, v{ac+1}")
                    a(f"v_cvt_pk_bf16_f32 v{96+4*T+2*rt+1}, v{ac+2}, v{ac+3}")
            for i in range(4): a(f"v_mov_b32 v{136+i}, 0x3f803f80")
            a("v_mul_u32_u24 v5, 80, v2")
            a("v_lshl_add_u32 v5, v3, 4, v5")
            a("s_mul_i32 s52, s3, 6720")
            a(f"s_add_u32 s52, s52, {RED_OFF}")
            a("v_add_u32 v5, s52, v5")
            pairs = [(bt, at) for bt in range(5) for at in range(5) if abs(bt - at) <= 1]
            for i, (bt, at) in enumerate(pairs):
                a(f"v_mfma_f32_16x16x32_bf16 {vr(140+4*i,4)}, {vr(96+4*bt,4)}, {vr(116+4*at,4)}, 0")
            for bt in range(5):
                a(f"v_mfma_f32_16x16x32_bf16 {vr(192+4*bt,4)}, {vr(96+4*bt,4)}, v[136:139], 0")
            for i, (bt, at) in enumerate(pairs):
                m = 0
                for l in range(64):
                    e = 16*at + (l & 15); d = 16*bt + 4*(l >> 4)
                    if e // 20 == d // 20: m |= 1 << l
                a(f"s_mov_b32 exec_lo, {m & 0xffffffff:#x}")
                a(f"s_mov_b32 exec_hi, {m >> 32:#x}")
                a(f"ds_write_b128 v5, {vr(140+4*i,4)} offset:{4*(320*at + 16*bt)}")
            for bt in range(5):
                byx = {}
                for g in range(4):
                    h = (16*bt + 4*g) // 20
                    x, j = divmod(20*h + 20, 16)
                    byx.setdefault(x, 0)
                    byx[x] |= 1 << (16*g + j)
                for x, m in byx.items():
                    a(f"s_mov_b32 exec_lo, {m & 0xffffffff:#x}")
                    a(f"s_mov_b32 exec_hi, {m >> 32:#x}")
                    a(f"ds_write_b128 v5, {vr(192+4*bt,4)} offset:{4*(320*x + 16*bt)}")
            a("s_mov_b64 exec, -1")
            a("s_branch LG1_red")
        else:
            srd(a, 8, P_WS, 64*40*1024, WS_PQ)
            a("v_lshrrev_b32 v5, 1, v3")
            a("v_lshlrev_b32 v5, 9, v5")
            a("v_lshl_add_u32 v5, v2, 4, v5")
            a("v_and_b32 v6, 1, v3")
            a("v_lshl_add_u32 v5, v6, 3, v5")
            a("s_mul_i32 s55, s49, 10240")
            a("s_add_u32 s55, s55, s53")
            for T in range(10):
                for rt in range(2):
                    ac = ACC + 8*T + 4*rt
                    phi2(a, ac, 176); phi2(a, ac+2, 178)
                    a(f"v_cvt_pk_bf16_f32 v{ac}, v{ac}, v{ac+1}")
                    a(f"v_cvt_pk_bf16_f32 v{ac+1}, v{ac+2}, v{ac+3}")
                    a(f"buffer_store_dwordx2 {vr(ac,2)}, v5, s[8:11], s55 offen offset:{(T % 4)*1024 + rt*256}")
                if T % 4 == 3: a("s_add_u32 s55, s55, 4096")
            stamp(a, 5)
            stamp_flush(a, 0)
            a("s_endpgm")
    a.label("LG1_load")
    a("s_sub_u32 s52, s3, 4")
    a("s_and_b32 s53, s45, 3")
    a("s_mul_i32 s53, s53, 5")
    a("s_lshr_b32 s53, s53, 1")
    a("s_mul_i32 s54, s47, 5")
    a("s_add_u32 s54, s54, 1")
    a("s_mul_i32 s54, s54, 43")
    a("s_lshr_b32 s54, s54, 7")
    a("s_add_u32 s53, s53, s54")
    a("s_add_u32 s53, s53, s44")
    a("s_mul_i32 s54, s53, 26")
    a("s_lshr_b32 s54, s54, 8")
    a("s_mul_i32 s54, s54, 10")
    a("s_sub_u32 s64, s53, s54")
    a("v_lshrrev_b32 v2, 3, v1")
    a("v_lshrrev_b32 v3, 1, v2")
    a("v_and_b32 v4, 7, v1")
    a("v_xor_b32 v3, v3, v4")
    a("v_mul_u32_u24 v2, 1280, v2")
    a("v_lshl_add_u32 v13, v3, 4, v2")
    a("v_xor_b32 v14, 64, v13")
    a("v_add_u32 v14, 10240, v14")
    a("s_mul_i32 s65, s46, 163840")
    a("s_mul_i32 s54, s52, 40960")
    a("s_add_u32 s65, s65, s54")
    a("s_mul_i32 s53, s52, 320")
    a("v_add_u32 v2, s53, v1")
    a("s_mov_b32 s56, 0")
    for i in range(5):
        a(f"v_add_u32 v3, {64*i}, v2")
        a("v_mul_u32_u24 v4, 3277, v3")
        a("v_lshrrev_b32 v4, 16, v4")
        a("v_mul_u32_u24 v5, 20, v4")
        a("v_sub_u32 v5, v3, v5")
        a("v_lshrrev_b32 v6, 2, v4")
        a("v_and_b32 v6, 2, v6")
        a("v_xor_b32 v5, v5, v6")
        a("v_cmp_le_u32 vcc, 10, v5")
        a("v_mul_u32_u24 v4, 3840, v4")
        a("v_lshl_add_u32 v4, v5, 4, v4")
        a("v_mov_b32 v6, s51")
        a("v_cndmask_b32 v6, 0, v6, vcc")
        a(f"v_add_u32 v{8+i}, v4, v6")
    a("s_mul_i32 s54, s52, 5120")
    a("s_lshl_b32 s53, s52, 12")
    a(f"s_add_u32 s53, s53, {CH_W}")
    a("s_lshl_b32 s57, s49, 2")
    a("v_mov_b32 v16, 1")
    a("v_mov_b32 v17, 0")
    a("s_add_u32 s58, s63, s52")
    a("s_waitcnt lgkmcnt(0)")
    srd(a, 4, P_W, 640*3840)
    srd(a, 68, P_X, 2048*1280)
    srd(a, 12, P_DBG, 256)
    a("s_mul_i32 s55, s49, 6720")
    a(f"s_add_u32 s55, s55, {WS_KV}")
    srd(a, 8, P_WS, 6720, "s55")
    def dma(ch):
        buf = ch % NBUF
        a(f"s_mul_i32 s59, s64, {64*3840}")
        a("s_add_u32 s59, s59, s50")
        a("s_lshl_b32 s66, s64, 7")
        a("s_add_u32 s66, s66, s65")
        a("s_add_u32 s67, s66, 20480")
        for i in range(4):
            a(f"s_add_u32 m0, s53, {buf*CH_BYTES + 1024*i}")
            a("s_nop 0")
            a(f"buffer_load_dwordx4 v{13+(i&1)}, s[68:71], {'s66' if i < 2 else 's67'} offen lds")
        for i in range(5):
            a(f"s_add_u32 m0, s54, {buf*CH_BYTES + 1024*i}")
            a("s_nop 0")
            a(f"buffer_load_dwordx4 v{8+i}, s[4:7], s59 offen lds")
        a("s_add_u32 s64, s64, 1")
        a("s_cmp_eq_u32 s64, 10")
        a("s_cselect_b32 s64, 0, s64")
    stamp(a, 1)
    dma(0)
    a("s_cmp_lg_u32 s58, 0")
    a("s_cbranch_scc1 LG1_l0")
    a("s_mov_b64 exec, 1")
    a("buffer_atomic_add v16, v17, s[12:15], s57 offen sc0")
    a("s_mov_b64 exec, -1")
    a.label("LG1_l0")
    dma(1)
    stamp(a, 2)
    for ch in range(11):
        if ch < 10: a(f"s_waitcnt vmcnt({9 if ch < 9 else 0})")
        if ch == 0: stamp(a, 3)
        if ch == 6: stamp(a, 4)
        a("s_barrier")
        if ch == 0:
            a("s_cmp_lg_u32 s58, 0")
            a("s_cbranch_scc1 LG1_l1")
            a("v_readfirstlane_b32 s56, v16")
            a("s_nop 0")
            a("s_cmp_eq_u32 s56, 0")
            a("s_cselect_b32 s56, 1, 0")
            a("s_cbranch_scc0 LG1_l1")
            a("v_lshlrev_b32 v18, 4, v1")
            for i in range(4): a(f"v_mov_b32 v{20+i}, 0")
            a("s_mov_b32 s66, 4096")
            for i in range(7):
                so = "0" if i < 4 else "s66"
                a(f"buffer_store_dwordx4 v[20:23], v18, s[8:11], {so} offen offset:{1024*(i%4)} sc0 sc1")
            a.label("LG1_l1")
        if ch == 2:
            a("s_cmp_eq_u32 s56, 0")
            a("s_cbranch_scc1 LG1_l2")
            a("v_mov_b32 v16, 1")
            a("s_mov_b64 exec, 1")
            a("buffer_atomic_add v16, v17, s[12:15], s57 offen offset:128")
            a("s_mov_b64 exec, -1")
            a.label("LG1_l2")
        if ch + 2 < 10: dma(ch + 2)
    a("s_cmp_eq_u32 s63, 1")
    a("s_cbranch_scc1 Lend")
    a("s_cmp_lg_u32 s58, 0")
    a("s_cbranch_scc1 LG1_red2")
    a("s_mov_b32 s67, 0")
    a.label("LG1_poll")
    a("s_add_u32 s67, s67, 1")
    a("s_cmp_ge_u32 s67, 0x40000")
    a("s_cbranch_scc1 LG1_red2")
    a("buffer_load_dword v16, v17, s[12:15], s57 offen offset:128 sc0 sc1")
    a("s_waitcnt vmcnt(0)")
    a("v_readfirstlane_b32 s56, v16")
    a("s_nop 0")
    a("s_cmp_eq_u32 s56, 0")
    a("s_cbranch_scc0 LG1_red2")
    a("s_sleep 2")
    a("s_branch LG1_poll")
    a.label("LG1_red")
    a("s_mul_i32 s55, s49, 6720")
    a(f"s_add_u32 s55, s55, {WS_KV}")
    srd(a, 8, P_WS, 6720, "s55")
    a.label("LG1_red2")
    a("v_lshlrev_b32 v2, 2, v0")
    a(f"v_add_u32 v3, {RED_OFF}, v2")
    a("s_waitcnt lgkmcnt(0)")
    stamp(a, 5)
    a("s_barrier")
    stamp(a, 6)
    for n in range(4):
        for w in range(4):
            a(f"ds_read_b32 v{8+4*n+w}, v3 offset:{6720*w + 2048*n}")
    a("s_mov_b32 s66, 4096")
    for n in range(4):
        a(f"s_waitcnt lgkmcnt({12-4*n})")
        a(f"v_add_f32 v{8+4*n}, v{8+4*n}, v{9+4*n}")
        a(f"v_add_f32 v{10+4*n}, v{10+4*n}, v{11+4*n}")
        a(f"v_add_f32 v{8+4*n}, v{8+4*n}, v{10+4*n}")
        so = "0" if n < 2 else "s66"
        a(f"buffer_atomic_add_f32 v{8+4*n}, v2, s[8:11], {so} offen offset:{2048*(n%2)}")
    stamp_flush(a, 0)
    a("s_endpgm")

KVI = 81920
def gen_G2(a):
    a.label("LG2")
    a.vm_reset(); a.lds_reset()
    a("s_and_b32 s46, s44, 3")
    a("s_lshl_b32 s46, s46, 2")
    a("s_and_b32 s47, s45, 3")
    a("s_add_u32 s46, s46, s47")
    a("s_lshr_b32 s47, s44, 2")
    a("s_mul_i32 s47, s47, 5")
    a("s_lshr_b32 s48, s45, 2")
    a("s_add_u32 s47, s47, s48")
    a("s_and_b32 s48, s3, 3")
    a("s_lshr_b32 s49, s3, 2")
    a("v_lshlrev_b32 v2, 4, v1")
    a("s_waitcnt lgkmcnt(0)")
    stamp(a, 1)
    a("s_mul_i32 s50, s3, 6720")
    a(f"s_add_u32 s51, s50, {WS_KV}")
    srd(a, 8, P_WS, 6720, "s51")
    a("s_mov_b32 s66, 4096")
    KVR = 16
    kt = []
    for i in range(7):
        so = "0" if i < 4 else "s66"
        kt.append(a.vm(f"buffer_load_dwordx4 {vr(KVR+4*i,4)}, v2, s[8:11], {so} offen offset:{1024*(i%4)}"))
    srd(a, 4, P_WS, 64*40*1024, WS_PQ)
    a("s_lshl_b32 s52, s46, 2")
    a("s_add_u32 s52, s52, s48")
    a("s_mul_i32 s53, s52, 40960")
    a("s_mul_i32 s54, s49, 20480")
    a("s_add_u32 s53, s53, s54")
    PQ = 96
    ptok = []
    def loadpq(c):
        ptok.append(a.vm(f"buffer_load_dwordx4 {vr(PQ+4*c,4)}, v2, s[4:7], s53 offen offset:{1024*(c%4)}"))
        if c % 4 == 3: a("s_add_u32 s53, s53, 4096")
    for c in range(5): loadpq(c)
    srd(a, 12, P_WO, 640*1280)
    a("v_lshrrev_b32 v3, 3, v1")
    a("v_and_b32 v4, 7, v1")
    a("v_and_b32 v5, 2, v3")
    a("v_lshlrev_b32 v5, 1, v5")
    a("v_xor_b32 v4, v4, v5")
    a("v_lshlrev_b32 v4, 4, v4")
    for m in range(5):
        a(f"v_add_u32 v5, {8*m}, v3")
        a("v_mul_u32_u24 v6, 26, v5")
        a("v_lshrrev_b32 v6, 8, v6")
        a("v_mul_u32_u24 v6, 10, v6")
        a("v_add_u32 v5, v5, v6")
        a("v_mul_u32_u24 v5, 1280, v5")
        a(f"v_add_u32 v{8+m}, v5, v4")
    a("s_mul_i32 s55, s3, 102400")
    a("s_lshl_b32 s56, s47, 7")
    a("s_add_u32 s55, s55, s56")
    a("s_add_u32 s56, s55, 12800")
    a("s_mul_i32 s57, s3, 10240")
    for i in range(10):
        a(f"s_add_u32 m0, s57, {1024*i}")
        a("s_nop 0")
        wt = a.vm(f"buffer_load_dwordx4 v{8+i//2}, s[12:15], {'s55' if i % 2 == 0 else 's56'} offen lds")
    for c in range(5, 20): loadpq(c)
    stamp(a, 2)
    a(f"s_add_u32 s50, s50, {KVI}")
    a("v_mov_b32 v44, 0")
    a("v_mov_b32 v45, 0")
    for i in range(4):
        a(f"v_add_u32 v5, {64*i}, v1")
        a("v_min_u32 v5, 251, v5")
        a("v_mul_u32_u24 v6, 21846, v5")
        a("v_lshrrev_b32 v6, 16, v6")
        a("v_mul_u32_u24 v7, 3, v6")
        a("v_sub_u32 v5, v5, v7")
        a("v_mul_u32_u24 v7, 3121, v6")
        a("v_lshrrev_b32 v7, 16, v7")
        a("v_add3_u32 v5, v5, v7, 5")
        a("v_and_b32 v5, 7, v5")
        a("v_mul_u32_u24 v6, 80, v6")
        a("v_lshl_add_u32 v5, v5, 3, v6")
        a("v_add_u32 v5, s50, v5")
        a.lds("ds_write_b64 v5, v[44:45]")
    for i in range(7):
        a(f"v_add_u32 v5, {64*i}, v1")
        a("v_mul_u32_u24 v6, 52429, v5")
        a("v_lshrrev_b32 v6, 18, v6")
        a("v_mul_u32_u24 v7, 3121, v6")
        a("v_lshrrev_b32 v7, 16, v7")
        a("v_add_u32 v5, v5, v7")
        a("v_mul_u32_u24 v6, 40, v6")
        a("v_lshl_add_u32 v5, v5, 3, v6")
        a(f"v_add_u32 v{48+i}, s50, v5")
    a("v_and_b32 v5, 31, v1")
    a("v_lshrrev_b32 v6, 3, v5")
    a("v_lshlrev_b32 v6, 2, v6")
    a("v_and_b32 v7, 3, v5")
    a("v_add_u32 v6, v6, v7")
    a("v_bfe_u32 v7, v5, 2, 1")
    a("v_mul_u32_u24 v7, 10, v7")
    a("v_add_u32 v7, v7, v6")
    a("v_cmp_gt_u32 vcc, 10, v6")
    a("v_lshrrev_b32 v5, 5, v1")
    a("s_mul_i32 s58, s49, 26880")
    a("v_cndmask_b32 v7, 20, v7, vcc")
    a("v_mul_u32_u24 v7, 80, v7")
    a("v_lshl_add_u32 v7, v5, 4, v7")
    a(f"s_add_u32 s58, s58, {KVI}")
    a("v_add_u32 v13, s58, v7")
    a("v_bfe_u32 v6, v1, 2, 2")
    a("v_lshl_add_u32 v7, v5, 3, v6")
    a("v_lshlrev_b32 v7, 7, v7")
    a("v_and_b32 v5, 1, v1")
    a("v_lshl_add_u32 v7, v5, 5, v7")
    a("v_and_b32 v5, 16, v1")
    a("v_add_u32 v7, v7, v5")
    a("v_and_b32 v5, 2, v1")
    a("v_lshl_add_u32 v7, v5, 2, v7")
    a("s_mul_i32 s58, s49, 40960")
    a("v_add_u32 v7, s58, v7")
    a("v_and_b32 v6, 2, v6")
    a("v_lshlrev_b32 v6, 5, v6")
    a("v_add_u32 v14, v7, v6")
    a("v_sub_u32 v15, v7, v6")
    a("v_add_u32 v15, 64, v15")
    a(f"s_mov_b32 s62, {EPS}")
    for i in range(7):
        a.vm_wait(kt[i])
        b = KVR + 4*i
        a(f"v_cvt_pk_bf16_f32 v{b}, v{b}, v{b+1}")
        a(f"v_cvt_pk_bf16_f32 v{b+1}, v{b+2}, v{b+3}")
        if i == 6:
            a("s_mov_b32 exec_hi, 0xf")
        a.lds(f"ds_write_b64 v{48+i}, {vr(b,2)}")
    a("s_mov_b64 exec, -1")
    stamp(a, 3)
    a.vm_wait(wt)
    a("s_waitcnt lgkmcnt(0)")
    a("s_barrier")
    stamp(a, 4)
    a.lds_reset()
    DD = 16
    OO = 48
    RC = 88
    ACC = 176
    KF = 208
    WF = 224
    ktok = {}
    def issueK(n):
        hl, cc = divmod(n, 2)
        ktok[n] = a.lds(f"ds_read_b128 {vr(KF+4*(n%4),4)}, v13 offset:{hl*1680 + cc*32}")
    wtok = {}
    def issueW(n):
        st, tau = divmod(n, 2)
        b = WF + 4*(n % 8)
        a.lds(f"ds_read_b64_tr_b16 {vr(b,2)}, v{14+tau} offset:{st*2048}")
        wtok[n] = a.lds(f"ds_read_b64_tr_b16 {vr(b+2,2)}, v{14+tau} offset:{st*2048+512}")
    def omfma(hl):
        d = DD + 16*(hl % 2)
        c0 = (5*hl) >> 2
        for cc in range(2):
            n = 2*hl + cc
            a.vm_wait(ptok[c0+cc])
            a.lds_wait(ktok[n])
            c = "0" if cc == 0 else vr(d, 16)
            a(f"v_mfma_f32_32x32x16_bf16 {vr(d,16)}, {vr(KF+4*(n%4),4)}, {vr(PQ+4*(c0+cc),4)}, {c}")
        for cc in range(2):
            if 2*hl + cc + 4 < 32: issueK(2*hl + cc + 4)
    def ovalu(hl):
        d = DD + 16*(hl % 2)
        o = OO + 20*((hl // 4) % 2) + 5*(hl % 4)
        L = [f"v_add_f32 v{RC}, s62, v{d+10}", f"v_rcp_f32 v{RC}, v{RC}", "s_nop 0"]
        for i in range(5):
            L.append(f"v_pk_mul_f32 {vr(d+2*i,2)}, {vr(d+2*i,2)}, {vr(RC,2)} op_sel_hi:[1,0]")
        for i in range(5):
            L.append(f"v_cvt_pk_bf16_f32 v{o+i}, v{d+2*i}, v{d+2*i+1}")
        return L
    def gmfma(n):
        st, tau = divmod(n, 2)
        Q, m = divmod(st, 5)
        o = OO + 20*(Q % 2) + 4*m
        a.lds_wait(wtok[n])
        c = "0" if st == 0 else vr(ACC+16*tau, 16)
        a(f"v_mfma_f32_32x32x16_bf16 {vr(ACC+16*tau,16)}, {vr(WF+4*(n%8),4)}, {vr(o,4)}, {c}")
        if n + 4 < 40: issueW(n + 4)
    for n in range(4): issueK(n)
    for n in range(4): issueW(n)
    gn = 0
    for hl in range(17):
        if hl < 16: omfma(hl)
        ng = 0
        avail = 10 * ((hl - 1) // 4) if hl >= 1 else 0
        want = [3, 3, 2, 2][(hl - 1) % 4] if hl >= 1 else 0
        while gn < avail and ng < want: gmfma(gn); gn += 1; ng += 1
        if hl >= 1:
            if ng < 2: a("s_nop 7")
            if hl == 16: a("s_nop 3")
            for l in ovalu(hl - 1): a(l)
    a("s_nop 1")
    while gn < 40: gmfma(gn); gn += 1
    stamp(a, 5)
    a("s_lshl_b32 s50, s3, 12")
    a("v_add_u32 v3, s50, v2")
    a("s_xor_b32 s51, s50, 16384")
    a("v_add_u32 v4, s51, v2")
    srd(a, 8, P_OUT, 2048*2560)
    a("v_and_b32 v5, 31, v1")
    a("v_mul_u32_u24 v5, 2560, v5")
    a("v_lshrrev_b32 v6, 5, v1")
    a("v_lshl_add_u32 v5, v6, 5, v5")
    a("s_mul_i32 s53, s52, 81920")
    a("s_lshl_b32 s54, s47, 7")
    a("s_add_u32 s53, s53, s54")
    a("s_lshl_b32 s54, s49, 6")
    a("s_add_u32 s53, s53, s54")
    a("s_add_u32 s53, s53, 1280")
    a("s_barrier")
    a("s_cmp_eq_u32 s49, 0")
    a("s_cbranch_scc1 LG2_x0")
    for i in range(4): a(f"ds_write_b128 v3, {vr(ACC+4*i,4)} offset:{1024*i}")
    for i in range(16): a(f"v_mov_b32 v{16+i}, v{ACC+16+i}")
    a("s_branch LG2_x1")
    a.label("LG2_x0")
    for i in range(4): a(f"ds_write_b128 v3, {vr(ACC+16+4*i,4)} offset:{1024*i}")
    for i in range(16): a(f"v_mov_b32 v{16+i}, v{ACC+i}")
    a.label("LG2_x1")
    a("s_waitcnt lgkmcnt(0)")
    a("s_barrier")
    for i in range(4): a(f"ds_read_b128 {vr(32+4*i,4)}, v4 offset:{1024*i}")
    for i in range(4):
        a(f"s_waitcnt lgkmcnt({3-i})")
        a(f"v_pk_add_f32 {vr(16+4*i,2)}, {vr(16+4*i,2)}, {vr(32+4*i,2)}")
        a(f"v_pk_add_f32 {vr(18+4*i,2)}, {vr(18+4*i,2)}, {vr(34+4*i,2)}")
        a(f"v_cvt_pk_bf16_f32 v{48+2*i}, v{16+4*i}, v{17+4*i}")
        a(f"v_cvt_pk_bf16_f32 v{49+2*i}, v{18+4*i}, v{19+4*i}")
        if i % 2 == 1:
            a(f"buffer_store_dwordx4 {vr(48+4*(i//2),4)}, v5, s[8:11], s53 offen offset:{16*(i//2)}")
    stamp_flush(a, 0)
    a("s_endpgm")

def kd(name):
    return f""".p2align 6
.amdhsa_kernel {name}
  .amdhsa_next_free_vgpr 256
  .amdhsa_next_free_sgpr 96
  .amdhsa_accum_offset 256
  .amdhsa_group_segment_fixed_size 0
  .amdhsa_kernarg_size 104
  .amdhsa_user_sgpr_count 2
  .amdhsa_user_sgpr_kernarg_segment_ptr 1
  .amdhsa_system_sgpr_workgroup_id_x 1
.end_amdhsa_kernel
"""

def main(out):
    hdr = open(f"cdna_kernels/{NAME}.s.ref").read().split("; Override launch")[0]
    a = Asm()
    a(".text")
    a.label("Lcode_start")
    a(".globl k1_kernel\n.p2align 8\n.type k1_kernel,@function")
    a.label("k1_kernel")
    prologue(a, "1")
    a("s_cmp_lt_u32 s45, 24")
    a("s_cbranch_scc1 LG1")
    a("s_lshl_b32 s42, s44, 5")
    a("s_sub_u32 s46, s45, 24")
    a("s_lshl_b32 s46, s46, 2")
    a("s_add_u32 s42, s42, s46")
    a("s_branch LA")
    gen_G1(a)
    a.label("Lend")
    a("s_endpgm")
    gen_A(a)
    a(".globl k2_kernel\n.p2align 8\n.type k2_kernel,@function")
    a.label("k2_kernel")
    prologue(a, "2")
    a("s_cmp_lt_u32 s45, 20")
    a("s_cbranch_scc1 LG2")
    a("s_mul_i32 s42, s44, 48")
    a("s_sub_u32 s46, s45, 20")
    a("s_lshl_b32 s46, s46, 2")
    a("s_add_u32 s42, s42, s46")
    a("s_add_u32 s42, s42, 256")
    a("s_branch LA")
    gen_G2(a)
    a.label("Lcode_end")
    for m in check_hazards(a.lines): print(m)
    txt = hdr
    txt += f"; @launch kernel=k1_kernel grid=(256,1,1) block=(512,1,1) lds={LDS_BYTES}\n"
    txt += f"; @launch kernel=k2_kernel grid=(256,1,1) block=(512,1,1) lds={LDS_BYTES}\n"
    txt += '.amdgcn_target "amdgcn-amd-amdhsa--gfx950"\n'
    txt += a.text()
    txt += '.section .rodata,"a"\n' + kd("k1_kernel") + kd("k2_kernel")
    open(out, "w").write(txt)
if len(sys.argv) > 2 and sys.argv[2] == "stamps": STAMPS = True
main(sys.argv[1] if len(sys.argv) > 1 else f"cdna_kernels/{NAME}.s")
```

```python
import re
class Asm:
    def __init__(self):
        self.lines = []
        self.lds_issued = 0
        self.lds_done = 0
        self.vm_issued = 0
        self.vm_done = 0
    def __call__(self, s):
        for l in s.split("\n"):
            l = l.strip()
            if l: self.lines.append(l)
    def label(self, n): self.lines.append(n + ":")
    def comment(self, s): self.lines.append("; " + s)
    def lds(self, s):
        self(s); self.lds_issued += 1; return self.lds_issued
    def lds_wait(self, tok):
        if tok <= self.lds_done: return
        n = self.lds_issued - tok
        n = min(n, 15)
        self(f"s_waitcnt lgkmcnt({n})")
        self.lds_done = self.lds_issued - n
    def lds_reset(self): self.lds_issued = self.lds_done = 0
    def vm(self, s):
        self(s); self.vm_issued += 1; return self.vm_issued
    def vm_wait(self, tok):
        if tok <= self.vm_done: return
        n = min(self.vm_issued - tok, 63)
        self(f"s_waitcnt vmcnt({n})")
        self.vm_done = self.vm_issued - n
    def vm_reset(self): self.vm_issued = self.vm_done = 0
    def text(self): return "\n".join(self.lines) + "\n"

def vr(b, n=1):
    return f"v{b}" if n == 1 else f"v[{b}:{b+n-1}]"
def sr(b, n=1):
    return f"s{b}" if n == 1 else f"s[{b}:{b+n-1}]"

_reg = re.compile(r"^(-|abs\()?([vas])(?:(\d+)|\[(\d+):(\d+)\])\)?$")
def _regs(tok):
    m = _reg.match(tok.strip())
    if not m: return None
    f = m.group(2)
    if m.group(3) is not None: lo = hi = int(m.group(3))
    else: lo, hi = int(m.group(4)), int(m.group(5))
    return {(f, i) for i in range(lo, hi + 1)}
TRANS = ("v_exp_f32", "v_log_f32", "v_rcp_f32", "v_rsq_f32", "v_sqrt_f32", "v_sin_f32", "v_cos_f32")
def parse(line):
    line = line.split(";")[0].strip()
    if not line or line.endswith(":") or line.startswith("."): return None
    parts = line.split(None, 1)
    mn = parts[0]
    ops = []
    if len(parts) > 1:
        depth = 0; cur = ""
        for ch in parts[1]:
            if ch == "[": depth += 1
            if ch == "]": depth -= 1
            if ch == "," and depth == 0: ops.append(cur.strip()); cur = ""
            else: cur += ch
        ops.append(cur.strip())
        ops = [o.split()[0] if o else o for o in ops]
    R = [(_regs(o) or set()) for o in ops]
    for i, o in enumerate(ops):
        if o == "vcc": R[i] = {("s", 106), ("s", 107)}
        if o == "m0": R[i] = {("s", 124)}
        if o == "exec": R[i] = {("s", 126), ("s", 127)}
    d = dict(mn=mn, w=set(), r=set(), kind="other", srcc=set(), ab=set(), line=line)
    allr = lambda l: set().union(*l) if l else set()
    if mn.startswith("v_mfma"):
        d.update(kind="mfma", w=R[0], r=allr(R[1:4]), srcc=R[3], ab=R[1] | R[2])
        d["passes"] = 8 if "32x32" in mn else 4
    elif mn.startswith("v_"):
        d.update(kind="valu", w=R[0], r=allr(R[1:]))
        if mn.startswith(("v_fmac", "v_writelane")) or "dpp" in line or "row_" in line or "wave_" in line: d["r"] |= R[0]
        if mn.startswith("v_permlane"): d["w"] = R[0] | R[1]; d["r"] = R[0] | R[1]
        if mn.startswith(("v_add_co", "v_addc_co", "v_sub_co")): d["w"] = R[0] | R[1]; d["r"] = allr(R[2:])
        if mn.startswith("v_cndmask") and len(ops) == 3: d["r"] |= {("s", 106), ("s", 107)}
        d["trans"] = mn.replace("_e64", "").replace("_e32", "") in TRANS
    elif mn.startswith("ds_"):
        if mn.startswith(("ds_read", "ds_bpermute", "ds_permute", "ds_swizzle")): d.update(kind="ds", w=R[0], r=allr(R[1:]))
        else: d.update(kind="ds", r=allr(R))
        if "addtid" in mn: d["r"] |= {("s", 124)}
    elif mn.startswith(("buffer_", "global_")):
        islds = " lds" in line
        if "load" in mn and not islds: d.update(kind="vmem", w=R[0], r=allr(R[1:]))
        elif "atomic" in mn and " sc0" in line and mn.startswith("global"): d.update(kind="vmem", w=R[0], r=allr(R[1:]))
        elif "atomic" in mn and " sc0" in line: d.update(kind="vmem", w=R[0], r=allr(R))
        else: d.update(kind="vmem", r=allr(R))
        if islds: d["r"] |= {("s", 124)}
        d["wide_store"] = ("store_dwordx4" in mn or "store_dwordx3" in mn)
        if d["wide_store"]: d["sdata"] = R[0] if mn.startswith("buffer") else R[1]
    elif mn.startswith("s_"):
        d.update(kind="salu")
        if not mn.startswith(("s_cmp", "s_cbranch", "s_branch", "s_waitcnt", "s_nop", "s_barrier", "s_endpgm", "s_setprio", "s_sleep")):
            d.update(w=R[0] if R else set(), r=allr(R[1:]))
        else: d.update(r=allr(R))
        if mn == "s_nop": d["nop"] = int(ops[0], 0) + 1
    return d

def fix_hazards(lines):
    out = []; n = 0
    for l in lines:
        if parse(l):
            w = out[-40:] + [l]
            short = check_hazards(w, last_only=True)
            if short > 0:
                out.append(f"s_nop {short-1}"); n += 1
        out.append(l)
    return out, n

def check_hazards(lines, last_only=False):
    ins = [p for p in (parse(l) for l in lines) if p]
    msgs = []
    short = 0
    for i, c in enumerate(ins):
        if last_only and i != len(ins) - 1: continue
        dist = 0
        for j in range(i - 1, max(-1, i - 24), -1):
            p = ins[j]
            need = 0
            pw_v = {x for x in p["w"] if x[0] in "va"}
            pw_s = {x for x in p["w"] if x[0] == "s"}
            if p["kind"] == "mfma":
                n = p["passes"]
                if c["kind"] == "mfma":
                    if pw_v & c["ab"]: need = max(need, n + 4)
                    if pw_v & c["srcc"] and not (c["srcc"] == pw_v and c["passes"] == n): need = max(need, n + 2)
                    if pw_v & c["w"] and c["w"] != c["srcc"] : need = max(need, n + 4)
                elif c["kind"] in ("valu", "ds", "vmem"):
                    if pw_v & (c["r"] | c["w"]): need = max(need, n + 4)
                    if c["kind"] == "valu" and p["srcc"] & c["w"]: need = max(need, n - 1)
            if p["kind"] == "valu":
                if c["kind"] == "mfma" and pw_v & c["r"]: need = max(need, 2)
                if p.get("trans") and c["kind"] == "valu" and not c.get("trans") and pw_v & c["r"]: need = max(need, 1)
                if p.get("trans") and c["kind"] in ("ds", "vmem") and pw_v & c["r"]: need = max(need, 1)
                if c["kind"] == "valu" and c["mn"].startswith(("v_readfirstlane", "v_readlane")) and pw_v & c["r"]: need = max(need, 1)
                if c["kind"] == "valu" and c["mn"].startswith("v_permlane") and pw_v & c["r"]: need = max(need, 2)
                if c["kind"] == "valu" and ("dpp" in c["line"] or "row_" in c["line"] or "wave_" in c["line"]) and pw_v & c["r"]: need = max(need, 2)
                if pw_s & c["r"]:
                    if c["kind"] == "vmem": need = max(need, 5)
                    elif c["kind"] == "valu": need = max(need, 4 if c["mn"].startswith(("v_readlane", "v_writelane")) else 2)
                    elif c["kind"] == "salu": need = max(need, 1)
            if p["kind"] == "salu" and ("s", 124) in pw_s and ("s", 124) in c["r"] and c["kind"] in ("ds", "vmem"): need = max(need, 1)
            if p["kind"] == "vmem" and p.get("wide_store") and p["sdata"] & c["w"]: need = max(need, 2)
            if need > dist:
                short = max(short, need - dist)
                msgs.append(f"hazard: need {need} have {dist}: [{p['line']}] -> [{c['line']}]")
            dist += p.get("nop", 1)
            if p["mn"] in ("s_endpgm", "s_branch"): break
    return short if last_only else msgs
```

```python
import sys, struct
from asmlib import *
NAME = "concat_heads__ssm_conv_s4d__linear_attn_block__prompt"
def f2u(x): return struct.unpack("<I", struct.pack("<f", x))[0]
LOG2E = f2u(1.4426950408889634)
INV2PI = f2u(0.15915494309189535)
EPS = f2u(1e-6)
LDS_BYTES = 147456
WS_PQ = 0
WS_KV = 0x300000
P_U, P_LA, P_AI, P_CR, P_CI, P_LDT, P_DSK, P_X = [16 + 2*i for i in range(8)]
P_W, P_WO, P_OUT, P_DBG = 32, 34, 36, 38
P_WS = 40
S_W = 3

def srd(a, d, p, size, off=None):
    if off is None:
        a(f"s_mov_b32 s{d}, s{p}")
        a(f"s_mov_b32 s{d+1}, s{p+1}")
    else:
        a(f"s_add_u32 s{d}, s{p}, {off}")
        a(f"s_addc_u32 s{d+1}, s{p+1}, 0")
    a(f"s_mov_b32 s{d+2}, {size}")
    a(f"s_mov_b32 s{d+3}, 0x20000")

def prologue(a, tag):
    a("s_cmp_ge_u32 s2, 256")
    a("s_cbranch_scc1 Lend")
    if STAMPS:
        for i in range(1, 8): a(f"s_mov_b32 s{72+2*i}, 0")
        a(f"s_mov_b32 s43, {0 if tag == '1' else 0x40000}")
    stamp(a, 0)
    a("s_load_dwordx16 s[16:31], s[0:1], 0")
    a("s_load_dwordx8 s[32:39], s[0:1], 64")
    a("s_load_dwordx2 s[40:41], s[0:1], 96")
    a("v_lshrrev_b32 v2, 6, v0")
    a("v_and_b32 v1, 63, v0")
    a("s_cmp_ge_u32 s2, 16")
    a(f"s_cbranch_scc1 Lnopf_{tag}")
    a("s_getpc_b64 s[64:65]")
    a.label(f"Lpc_{tag}")
    a(f"s_sub_u32 s64, s64, Lpc_{tag}-Lcode_start")
    a("s_subb_u32 s65, s65, 0")
    a("v_lshlrev_b32 v3, 7, v0")
    a("v_min_u32 v3, Lcode_end-Lcode_start-4, v3")
    a("global_load_dword v255, v3, s[64:65]")
    a.label(f"Lnopf_{tag}")
    a(f"v_readfirstlane_b32 s{S_W}, v2")
    a("s_and_b32 s44, s2, 7")
    a("s_lshr_b32 s45, s2, 3")

STAMPS = False
EXP = set(sys.argv[3:])
SF = lambda k: (" sc1" if k + "sc1" in EXP else " nt" if k + "nt" in EXP else " sc0 sc1" if k + "sc01" in EXP else "")
CLK = "s_memtime" if "cyc" in EXP else "s_memrealtime"
WS_ST = 0x380000
def stamp(a, idx, waves=None):
    if not STAMPS: return
    a(f"{CLK} s[{72+2*idx}:{73+2*idx}]")
    if idx > 0:
        a("s_waitcnt lgkmcnt(0)")
        a.lds_done = a.lds_issued
def stamp_flush(a, kern, n=8):
    if not STAMPS: return
    a("s_waitcnt vmcnt(0)")
    a(f"{CLK} s[{72+2*(n-1)}:{73+2*(n-1)}]")
    a("s_waitcnt lgkmcnt(0)")
    a("s_lshl_b32 s88, s2, 3")
    a("s_add_u32 s88, s88, s3")
    a("s_lshl_b32 s88, s88, 6")
    a("s_add_u32 s88, s88, s43")
    a(f"s_add_u32 s88, s88, {WS_ST}")
    a("s_add_u32 s90, s40, s88")
    a("s_addc_u32 s91, s41, 0")
    a("v_mov_b32 v250, 0")
    for i in range(n):
        a(f"v_mov_b32 v251, s{72+2*i}")
        a(f"global_store_dword v250, v251, s[90:91] offset:{4*i}")

def cmul(a, d, x, w):
    a(f"v_pk_mul_f32 {vr(d,2)}, {vr(x,2)}, {vr(w,2)} op_sel_hi:[1,0]")
    a(f"v_pk_fma_f32 {vr(d,2)}, {vr(x,2)}, {vr(w,2)}, {vr(d,2)} op_sel:[1,1,0] op_sel_hi:[0,1,1] neg_lo:[1,0,0]")

WS_UT = 0x400000
U_OFF, U_STR = 0, 1184
TAB_OFF, TAB_STR, ROW = 18944, 15504, 272
KX_REL, YS_REL, CAR_REL = 4096, 8448, 0
UR = 140
def gen_A(a):
    a.label("LA")
    a.lds_reset(); a.vm_reset()
    a("s_and_b32 s46, s3, 3")
    a("s_lshr_b32 s47, s3, 2")
    a("s_add_u32 s48, s42, s46")
    a("s_lshl_b32 s49, s48, 8")
    a("s_lshl_b32 s50, s47, 7")
    a("s_add_u32 s49, s49, s50")
    a("v_lshlrev_b32 v4, 1, v1")
    a("v_add_u32 v4, s49, v4")
    a("s_lshl_b32 s50, s48, 1")
    a("v_mov_b32 v5, s50")
    a("s_sub_u32 s55, s45, 20")
    a("s_lshl_b32 s55, s55, 3")
    a("s_add_u32 s55, s55, s3")
    a("s_mul_i32 s56, s55, 27")
    a("s_sub_u32 s56, s56, 5")
    a("v_min_u32 v13, 31, v1")
    a("v_add_u32 v13, s56, v13")
    a("v_min_u32 v13, 2559, v13")
    a("v_and_b32 v14, 15, v13")
    a("v_lshrrev_b32 v13, 4, v13")
    a("v_mul_u32_u24 v14, 40960, v14")
    a("v_lshl_add_u32 v13, v13, 7, v14")
    a("s_mul_i32 s55, s55, 5")
    a("v_add_u32 v14, s55, v1")
    a("v_min_u32 v14, 419, v14")
    a("v_lshlrev_b32 v14, 7, v14")
    a(f"v_add_u32 v14, {WS_KV}, v14")
    a("s_and_b32 s55, s44, 3")
    a("s_mul_i32 s55, s55, 655360")
    a("s_lshr_b32 s56, s44, 2")
    a("s_xor_b32 s56, s56, 1")
    a("s_mul_i32 s56, s56, 20480")
    a("s_add_u32 s55, s55, s56")
    a("v_cmp_gt_u32 vcc, 5, v1")
    a("v_add_u32 v13, s55, v13")
    a("v_cndmask_b32 v13, v13, v14, vcc")
    a("s_waitcnt lgkmcnt(0)")
    stamp(a, 1)
    a(f"global_load_ushort v20, v5, s[{P_LDT}:{P_LDT+1}]")
    a(f"global_load_ushort v16, v4, s[{P_LA}:{P_LA+1}]")
    a(f"global_load_ushort v17, v4, s[{P_AI}:{P_AI+1}]")
    a(f"global_load_ushort v18, v4, s[{P_CR}:{P_CR+1}]")
    a(f"global_load_ushort v19, v4, s[{P_CI}:{P_CI+1}]")
    a(f"global_load_ushort v21, v5, s[{P_DSK}:{P_DSK+1}]")
    a("s_cmp_eq_u32 s63, 1")
    a("s_cbranch_scc1 LA_k1a")
    a(f"global_load_dword v254, v13, s[{P_WS}:{P_WS+1}]")
    srd(a, 12, P_WS, 640*4096, WS_UT)
    a("v_lshlrev_b32 v6, 4, v0")
    a("s_lshl_b32 s54, s42, 12")
    a("s_add_u32 s55, s54, 8192")
    a(f"buffer_load_dwordx4 {vr(UR,4)}, v6, s[12:15], s54 offen")
    a(f"buffer_load_dwordx4 {vr(UR+4,4)}, v6, s[12:15], s55 offen")
    a("s_waitcnt vmcnt(3)")
    a("s_branch LA_kgen")
    a.label("LA_k1a")
    srd(a, 4, P_U, 2048*1280)
    a("s_lshl_b32 s50, s47, 6")
    a("v_add_u32 v55, s50, v1")
    a("v_mul_u32_u24 v56, 20480, v55")
    a("s_mul_i32 s64, s46, 1280")
    a("s_lshl_b32 s51, s42, 1")
    a("s_add_u32 s64, s64, s51")
    a("s_and_b32 s65, s45, 3")
    def scat(i):
        a(f"s_xor_b32 s50, s65, {i}")
        a("s_mul_i32 s50, s50, 5120")
        a("s_add_u32 s50, s50, s64")
        a(f"buffer_load_dwordx2 {vr(UR+2*i,2)}, v{56 if i == 0 else 18}, s[4:7], s50 offen")
    a("s_barrier")
    scat(0)
    a("s_waitcnt vmcnt(1)")
    a.label("LA_kgen")
    a("v_lshrrev_b32 v2, 5, v0")
    a(f"v_mul_u32_u24 v2, {U_STR}, v2")
    a("v_and_b32 v3, 31, v0")
    a("v_lshl_add_u32 v2, v3, 2, v2")
    a("v_mov_b32 v3, 0")
    a.lds(f"ds_write_b32 v2, v3 offset:{U_OFF}")
    a(f"s_mul_i32 s52, s3, {TAB_STR}")
    a(f"s_add_u32 s52, s52, {TAB_OFF}")
    a("s_mov_b32 m0, s52")
    a(f"s_mov_b32 s53, {LOG2E}")
    a(f"s_mov_b32 s54, {INV2PI}")
    a("s_mov_b32 s55, 0x43000000")
    a("v_and_b32 v22, 15, v1")
    a("v_lshrrev_b32 v23, 4, v1")
    a(f"v_mul_u32_u24 v54, {ROW}, v22")
    a("v_lshl_add_u32 v54, v23, 4, v54")
    a("v_add_u32 v54, s52, v54")
    stamp(a, 2)
    for r in (16, 17, 18, 19, 20, 21): a(f"v_lshlrev_b32 v{r}, 16, v{r}")
    a("v_mul_f32 v20, s53, v20")
    a("v_mul_f32 v16, s53, v16")
    a("v_exp_f32 v20, v20")
    a("v_exp_f32 v16, v16")
    a("s_nop 0")
    a("v_cvt_pk_bf16_f32 v16, v20, v16")
    a("v_lshlrev_b32 v20, 16, v16")
    a("v_and_b32 v16, 0xffff0000, v16")
    a("v_mul_f32 v16, v16, v20")
    a("v_mul_f32 v17, v17, v20")
    a("v_mul_f32_e64 v16, -v16, s53")
    a("v_mul_f32 v17, s54, v17")
    a("v_add_f32 v20, v20, v20")
    a("v_mul_f32 v34, v18, v20")
    a("v_mul_f32 v35, v19, v20")
    a("v_mul_f32 v18, s55, v16")
    a("v_mul_f32 v19, s55, v17")
    a("v_fract_f32 v17, v17")
    a("v_fract_f32 v19, v19")
    a("v_exp_f32 v16, v16")
    a("v_exp_f32 v18, v18")
    a("v_cos_f32 v24, v17")
    a("v_sin_f32 v25, v17")
    a("v_cos_f32 v32, v19")
    a("v_sin_f32 v33, v19")
    a("v_mul_f32 v24, v24, v16")
    a("v_mul_f32 v25, v25, v16")
    a("v_mul_f32 v32, v32, v18")
    a("v_mul_f32 v33, v33, v18")
    a(".p2align 3")
    W1, W2, W4, W8, W128 = 24, 26, 28, 30, 32
    cmul(a, W2, W1, W1); cmul(a, W4, W2, W2); cmul(a, W8, W4, W4)
    a("v_xor_b32 v31, 0x80000000, v31")
    tmp = [46]
    def put(row, x):
        t = tmp[0]; tmp[0] = 46 + (t - 46 + 1) % 7
        a(f"v_cvt_pk_bf16_f32 v{t}, v{x}, v{x+1}")
        a.lds(f"ds_write_addtid_b32 v{t} offset:{row*ROW}")
    a("v_mov_b32 v53, 0x3f80")
    a.lds(f"ds_write_addtid_b32 v53 offset:{41*ROW}")
    put(42, W8)
    y = W8
    for j in range(2, 16):
        d = 42 + 2*(j & 1)
        cmul(a, d, y, W8); put(41 + j, d); y = d
    g = 34; row = 0
    toks = {}
    def rdtile(t):
        for k in range(4):
            toks[(t, k)] = a.lds(f"ds_read_b128 {vr(64+16*t+4*k,4)}, v54 offset:{16*t*ROW + 64*k}")
    def mmtile(t):
        for k in range(4):
            a.lds_wait(toks[(t, k)])
            c = "0" if k == 0 else vr(128+4*t, 4)
            a(f"v_mfma_f32_16x16x32_bf16 {vr(128+4*t,4)}, {vr(64+16*t+4*k,4)}, {vr(112+4*k,4)}, {c}")
    for k in range(4):
        a.lds(f"ds_read_b128 {vr(112+4*k,4)}, v54 offset:{41*ROW + 64*k}")
    for h in range(17):
        put(row, g); row += 1
        if h < 2: steps, w = 7, W1
        elif h < 4: steps, w = 3, W2
        elif h < 8: steps, w = 1, W4
        else: steps = 0
        x = g
        for s in range(steps):
            d = 38 + 2*(s & 1)
            cmul(a, d, x, w); put(row, d); row += 1; x = d
        if h < 16:
            gn = 36 if g == 34 else 34
            cmul(a, gn, g, W128); g = gn
        if row == 16: rdtile(0)
        if row == 24: mmtile(0); a(".p2align 3")
        if row == 32: rdtile(1)
        if row == 38: mmtile(1); a(".p2align 3")
    assert row == 41
    rdtile(2)
    stamp(a, 3)
    a("v_lshrrev_b32 v2, 1, v23")
    a("v_and_b32 v3, 1, v23")
    a("v_lshlrev_b32 v8, 9, v2")
    a("v_lshl_add_u32 v8, v3, 4, v8")
    a("v_lshl_add_u32 v8, v22, 5, v8")
    a("v_add_u32 v8, s52, v8")
    a("v_sub_u32 v3, 4, v2")
    a("v_lshlrev_b32 v9, v3, v22")
    a("v_lshl_add_u32 v9, v23, 8, v9")
    a("v_add_u32 v9, s52, v9")
    a("v_mul_u32_u24 v3, 120, v2")
    a("v_add3_u32 v10, v9, v3, 8")
    a("v_lshlrev_b32 v11, 8, v23")
    a("v_lshl_add_u32 v11, v22, 2, v11")
    a("v_add_u32 v11, s52, v11")
    a("v_add_u32 v11, 2048, v11")
    a.lds(f"ds_write_b128 v8, {vr(128,4)}")
    a.lds(f"ds_write_b64 v9, {vr(132,2)} offset:1024")
    a.lds(f"ds_write_b64 v10, {vr(134,2)} offset:1024")
    mmtile(2)
    a("s_nop 7")
    a.lds(f"ds_write2_b32 v11, v136, v137 offset0:0 offset1:16")
    a.lds(f"ds_write2_b32 v11, v138, v139 offset0:32 offset1:48")
    a("s_cmp_eq_u32 s63, 1")
    a("s_cbranch_scc1 LA_k1b")
    a("v_bfe_u32 v12, v0, 1, 2")
    a(f"v_mul_u32_u24 v12, {U_STR}, v12")
    a("v_bfe_u32 v13, v0, 3, 5")
    a("v_lshl_add_u32 v12, v13, 5, v12")
    a("v_and_b32 v13, 1, v0")
    a("v_lshl_add_u32 v12, v13, 4, v12")
    a(f"s_mul_i32 s50, s47, {4*U_STR}")
    a("v_add_u32 v12, s50, v12")
    a("s_waitcnt vmcnt(0)")
    a(f"ds_write_b128 v12, {vr(UR,4)} offset:{U_OFF + 128}")
    a(f"ds_write_b128 v12, {vr(UR+4,4)} offset:{U_OFF + 8*U_STR + 128}")
    a.label("LA_k1b")
    a("s_waitcnt lgkmcnt(0)")
    a("s_barrier")
    stamp(a, 4)
    a.lds_reset()
    def stage_u():
        for i in range(1, 4): scat(i)
        a(f"s_mul_i32 s50, s46, {U_STR}")
        a("s_lshl_b32 s51, s65, 1")
        a("s_and_b32 s51, s51, 4")
        a("s_add_u32 s50, s50, s51")
        a("v_lshlrev_b32 v8, 3, v17")
        a("v_add_u32 v8, s50, v8")
        a("v_xor_b32 v9, 4, v8")
        a("s_bitcmp1_b32 s65, 0")
        a("s_cselect_b32 s56, 0x01000504, s66")
        a("s_cselect_b32 s57, 0x03020706, s67")
        for p in range(2):
            a(f"s_waitcnt vmcnt({2-2*p})")
            for ch in range(4):
                a(f"v_perm_b32 v{10+ch}, v{UR+4*p+2+ch//2}, v{UR+4*p+ch//2}, {'s56' if ch % 2 == 0 else 's57'}")
                a(f"ds_write_b32 v{8+p}, v{10+ch} offset:{U_OFF + 4*U_STR*ch + 128}")
    gen_A.stage_u = stage_u
    a("s_mov_b32 s66, 0x05040100")
    a("s_mov_b32 s67, 0x07060302")
    a("v_mov_b32 v17, v55")
    a("v_mov_b32 v18, v56")
    a("s_cmp_ge_u32 s3, 4")
    a("s_cbranch_scc1 LA_help")
    D2 = 4*TAB_STR
    a("v_lshlrev_b32 v2, 4, v1")
    a("v_add_u32 v2, s52, v2")
    a("v_lshlrev_b32 v3, 3, v1")
    a("v_add_u32 v3, s52, v3")
    t0 = a.lds(f"ds_read_b128 v[8:11], v2")
    t0 = a.lds(f"ds_read_b128 v[12:15], v2 offset:{D2}")
    tr = []
    for R, base in enumerate((256, 384, 512)):
        b = 24 + 8*R
        a.lds(f"ds_read_b64 {vr(b,2)}, v3 offset:{4*base}")
        a.lds(f"ds_read_b32 v{b+2}, v3 offset:{4*base+8}")
        a.lds(f"ds_read_b64 {vr(b+4,2)}, v3 offset:{4*base+D2}")
        tr.append(a.lds(f"ds_read_b32 v{b+6}, v3 offset:{4*base+8+D2}"))
    a("v_cmp_eq_u32 vcc, 0, v1")
    a("v_mov_b32 v4, 0")
    a("v_and_b32 v5, 7, v1")
    a("v_lshlrev_b32 v5, 2, v5")
    a("v_add_u32 v5, s52, v5")
    a("v_cndmask_b32 v21, v4, v21, vcc")
    a.lds(f"ds_write_b32 v5, v4 offset:{KX_REL}")
    a("v_mov_b32 v16, v5")
    a("v_lshlrev_b32 v7, 5, v1")
    a("v_add_u32 v7, s52, v7")
    a.lds_wait(t0)
    for i in range(4): a(f"v_add_f32 v{8+i}, v{8+i}, v{12+i}")
    a("v_add_f32 v8, v8, v21")
    a("v_cvt_pk_bf16_f32 v12, v8, v9")
    a("v_cvt_pk_bf16_f32 v13, v10, v11")
    a.lds(f"ds_write_b64 v3, v[12:13] offset:{KX_REL+32}")
    for R in range(3):
        b = 24 + 8*R
        a.lds_wait(tr[R])
        for i in range(3): a(f"v_add_f32 v{b+i}, v{b+i}, v{b+4+i}")
        A_, B_, C_ = b, b+1, b+2
        pats = [[(A_,A_),(B_,C_)], [(A_,A_),(A_,B_),(B_,B_),(C_,C_)],
                [(A_,A_),(A_,A_),(A_,B_),(B_,B_),(B_,B_),(B_,B_),(C_,C_),(C_,C_)]][R]
        o = [48, 52, 56][R]
        for i, (x, y) in enumerate(pats): a(f"v_cvt_pk_bf16_f32 v{o+i}, v{x}, v{y}")
        if R == 0: a.lds(f"ds_write_b64 v3, v[48:49] offset:{KX_REL+32+512}")
        elif R == 1: a.lds(f"ds_write_b128 v2, v[52:55] offset:{KX_REL+32+1024}")
        else:
            a.lds(f"ds_write_b128 v7, v[56:59] offset:{KX_REL+32+2048}")
            a.lds(f"ds_write_b128 v7, v[60:63] offset:{KX_REL+32+2048+16}")
    a("v_and_b32 v4, 3, v1")
    a("v_bfe_u32 v5, v1, 2, 2")
    a("v_sub_u32 v4, v4, v5")
    a("v_lshlrev_b32 v5, 3, v23")
    a("v_sub_u32 v4, v4, v5")
    a("v_add_u32 v4, 28, v4")
    a("v_lshlrev_b32 v4, 3, v4")
    a("v_add_u32 v4, s52, v4")
    AOP, ACC, BR, NB = 96, 160, 16, 20
    a("s_cmp_eq_u32 s63, 0")
    a("s_cbranch_scc1 LA_c0")
    gen_A.stage_u()
    a("s_waitcnt lgkmcnt(0)")
    a("s_barrier")
    a.label("LA_c0")
    for s in list(range(1, 16, 2)) + list(range(0, 16, 2)):
        a.lds(f"ds_read_b64_tr_b16 {vr(AOP+4*s,2)}, v4 offset:{KX_REL + 256*s + 32}")
        a.lds(f"ds_read_b64_tr_b16 {vr(AOP+4*s+2,2)}, v4 offset:{KX_REL + 256*s}")
    a(f"s_mul_i32 s50, s3, {4*U_STR}")
    a("v_lshlrev_b32 v5, 3, v22")
    a("v_lshl_add_u32 v5, v23, 4, v5")
    a("v_add_u32 v5, s50, v5")
    a("v_add_u32 v6, 16, v1")
    a("v_subrev_u32 v7, 47, v1")
    a("v_cmp_lt_u32 vcc, 47, v1")
    a("v_cndmask_b32 v6, v6, v7, vcc")
    a("v_cmp_eq_u32 vcc, 63, v1")
    acc = lambda par, q, i=0: ACC + 12*q + 6*par + i
    for q in range(8):
        for par in range(2):
            a(f"v_mov_b32 v{acc(par,q,4)}, 0")
            a(f"v_mov_b32 v{acc(par,q,5)}, 0")
    a("v_cndmask_b32 v6, v6, 64, vcc")
    a("v_lshlrev_b32 v6, 4, v6")
    a("v_add_u32 v6, s52, v6")
    a("v_mov_b32 v4, 0")
    a(f"ds_write_b32 v16, v4 offset:{CAR_REL}")
    a("s_waitcnt lgkmcnt(0)")
    stamp(a, 5)
    a.lds_reset()
    seq = [(r, rho) for r in range(-1, 15) for rho in range(4)]
    btok = {}
    breads = []
    for n, (r, rho) in enumerate(seq):
        b = BR + 4*(n % NB)
        off = U_OFF + rho*U_STR + 8 + 64*(r+1)
        breads.append((n, lambda b=b, off=off: a.lds(f"ds_read_b64 {vr(b,2)}, v5 offset:{off}")))
        breads.append((n, lambda b=b, off=off, n=n: btok.__setitem__(n, a.lds(f"ds_read_b64 {vr(b+2,2)}, v5 offset:{off+8}"))))
    for _ in range(6): breads.pop(0)[1]()
    epi = []
    def make_epi(q):
        E = lambda i: f"v{acc(0,q,i)}"
        O = lambda i: f"v{acc(1,q,i)}"
        tk = {}
        T = 8 + 4*(q % 2)
        L = []
        V = lambda t: L.append(("v", lambda: a(t)))
        V(f"v_add_f32 {O(3)}, {O(3)}, {E(4)}")
        V(f"v_add_f32 {O(4)}, {O(4)}, {E(5)}")
        L.append(("l", lambda: a.lds(f"ds_write_b128 v6, {vr(acc(1,q,2),4)} offset:{CAR_REL+1024*q}")))
        L.append(("l", lambda: tk.__setitem__(0, a.lds(f"ds_read_b128 {vr(T,4)}, v2 offset:{CAR_REL+1024*q}"))))
        V(f"v_add_f32 {E(1)}, {E(1)}, {O(0)}")
        V(f"v_add_f32 {E(2)}, {E(2)}, {O(1)}")
        V(f"v_add_f32 {E(3)}, {E(3)}, {O(2)}")
        L += [("d", None)]*8
        def fin():
            a.lds_wait(tk[0]); a(f"v_add_f32 {E(0)}, {E(0)}, v{T+1}")
        L.append(("v", fin))
        V(f"v_add_f32 {E(1)}, {E(1)}, v{T+2}")
        V(f"v_add_f32 {E(2)}, {E(2)}, v{T+3}")
        V(f"v_cvt_pk_bf16_f32 {E(4)}, {E(0)}, {E(1)}")
        V(f"v_cvt_pk_bf16_f32 {E(5)}, {E(2)}, {E(3)}")
        L.append(("l", lambda: tk.__setitem__(1, a.lds(f"ds_write_b64 v3, {vr(acc(0,q,4),2)} offset:{YS_REL + 512*q}"))))
        L += [("d", None)]*6
        def bar():
            a.lds_wait(tk[1]); a("s_barrier")
        L.append(("v", bar))
        return L
    for n, (r, rho) in enumerate(seq):
        b = BR + 4*(n % NB)
        qs = [q for q in range(8) if 0 <= 2*q - r <= 15]
        while n not in btok: breads.pop(0)[1]()
        a.lds_wait(btok[n])
        npad = 0
        for qi, q in enumerate(qs):
            s = 2*q - r
            d = acc(rho & 1, q, 2*(rho >> 1))
            c = "0" if (r == -1 and rho < 2) else vr(d, 4)
            a(f"v_mfma_f32_16x16x32_bf16 {vr(d,4)}, {vr(AOP+4*s,4)}, {vr(b,4)}, {c}")
            l0 = len(a.lines)
            slots, ldsok = 2, True
            ahead = (breads[0][0] - n) if breads else 99
            if breads and breads[0][0] < n + NB - 1 and (ahead < 4 or not (epi and epi[0][0] == "l")):
                breads.pop(0)[1](); slots -= 1; ldsok = False
            while slots > 0 and epi:
                k, f = epi[0]
                if k == "l" and not ldsok: break
                epi.pop(0)
                if k == "d": break
                f(); slots -= 1
                if k == "l": ldsok = False
            npad += 1 + len(a.lines) - l0
        if rho == 3 and r >= 0 and r % 2 == 0:
            epi.extend([("d", None)]*8 + make_epi(r // 2))
    for k, f in epi:
        if f: f()
    stamp(a, 6)
    stamp_flush(a, 0)
    a("s_endpgm")
    a.label("LA_help")
    a("s_cmp_eq_u32 s63, 0")
    a("s_cbranch_scc1 LA_hout")
    gen_A.stage_u()
    a("s_waitcnt lgkmcnt(0)")
    a("s_barrier")
    stamp(a, 5)
    a("s_sub_u32 s47, s45, 24")
    ab = len(a.lines)
    srd(a, 12, P_WO, 640*1280)
    a("s_lshl_b32 s53, s47, 2")
    a("s_add_u32 s53, s53, s46")
    a("s_mul_i32 s53, s53, 25600")
    a("s_lshr_b32 s54, s44, 2")
    a("s_mul_i32 s54, s54, 640")
    a("s_add_u32 s53, s53, s54")
    for i in range(2):
        a(f"v_add_u32 v2, {64*i}, v1")
        a("v_min_u32 v2, 99, v2")
        a("v_mul_u32_u24 v3, 205, v2")
        a("v_lshrrev_b32 v3, 10, v3")
        a("v_mul_u32_u24 v3, 640, v3")
        a("v_lshl_add_u32 v2, v2, 7, v3")
        a(f"buffer_load_dword v{60+i}, v2, s[12:15], s53 offen")
    a("s_cmp_lg_u32 s46, 3")
    a("s_cbranch_scc1 LA_hblk")
    a("s_mul_i32 s53, s44, 48")
    a("s_mul_i32 s54, s47, 6")
    a("s_add_u32 s53, s53, s54")
    a("s_add_u32 s53, s53, 256")
    a("s_lshl_b32 s53, s53, 8")
    a("v_min_u32 v2, 11, v1")
    a("v_lshlrev_b32 v2, 7, v2")
    a("v_add_u32 v2, s53, v2")
    for i, p in enumerate((P_LA, P_AI, P_CR, P_CI)):
        a(f"global_load_dword v{62+i}, v2, s[{p}:{p+1}]")
    a("s_branch LA_hout")
    a.label("LA_hblk")
    a("s_lshl_b32 s50, s47, 3")
    a("s_add_u32 s50, s50, s44")
    a("s_and_b32 s51, s50, 1")
    a("s_lshr_b32 s50, s50, 1")
    a("v_and_b32 v12, 7, v1")
    a("v_lshrrev_b32 v13, 3, v1")
    a("v_and_b32 v6, 1, v13")
    a("v_lshlrev_b32 v6, 5, v6")
    a("v_add_u32 v6, v6, v23")
    a("v_mul_u32_u24 v6, 1280, v6")
    a("v_lshl_add_u32 v6, v12, 4, v6")
    a("s_mul_i32 s53, s51, 3")
    a("s_add_u32 s53, s53, s46")
    a("s_mul_i32 s54, s50, 81920")
    a("s_lshl_b32 s55, s53, 7")
    a("s_add_u32 s54, s54, s55")
    a("s_add_u32 s54, s54, 512")
    for t in range(8):
        a(f"buffer_load_dwordx4 {vr(64+4*t,4)}, v6, s[4:7], s54 offen")
        if t < 7: a("s_add_u32 s54, s54, 5120")
    a("s_add_u32 s54, s52, 4223")
    a("s_and_b32 s54, s54, 0xffffff80")
    a("v_xor_b32 v14, v12, v13")
    a("v_lshlrev_b32 v14, 4, v14")
    a("v_lshl_add_u32 v15, v12, 10, v14")
    a("v_add_u32 v15, s54, v15")
    a("v_lshlrev_b32 v16, 4, v1")
    a("v_add_u32 v16, s54, v16")
    srd(a, 12, P_WS, 640*4096, WS_UT)
    a("v_lshlrev_b32 v17, 12, v13")
    a("v_lshl_add_u32 v17, v12, 4, v17")
    a("s_lshl_b32 s60, s53, 18")
    a("s_lshl_b32 s55, s50, 7")
    a("s_add_u32 s60, s60, s55")
    a(f"s_add_u32 s60, s60, {256*4096}")
    a.label("LA_hout")
    a("v_and_b32 v4, 3, v1")
    a("v_bfe_u32 v5, v1, 2, 2")
    a(f"v_mul_u32_u24 v5, {TAB_STR}, v5")
    a("v_lshl_add_u32 v5, v4, 7, v5")
    a("v_lshl_add_u32 v5, v23, 3, v5")
    a("s_lshl_b32 s50, s46, 5")
    a("v_add_u32 v5, s50, v5")
    srd(a, 8, P_OUT, 2048*2560)
    a("v_mul_u32_u24 v7, 2560, v1")
    a("s_mul_i32 s50, s46, 163840")
    a("s_lshl_b32 s51, s42, 1")
    a("s_add_u32 s50, s50, s51")
    a("s_cmp_lg_u32 s46, 3")
    a("s_cselect_b32 s61, s63, 0")
    def blk():
        a("s_cmp_eq_u32 s61, 0")
        a("s_cbranch_scc1 LA_hnb")
        a("s_waitcnt vmcnt(2)")
        for k in range(4):
            for e in range(8):
                a(f"v_perm_b32 v{96+4*e+k}, v{64+8*k+4+e//2}, v{64+8*k+e//2}, {'s66' if e % 2 == 0 else 's67'}")
        for e in range(8):
            a(f"ds_write_b128 v15, {vr(96+4*e,4)} offset:{128*e}")
        for i in range(8):
            a(f"v_xor_b32 v18, {16*i}, v16")
            a(f"ds_read_b128 {vr(64+4*i,4)}, v18 offset:{1024*i}")
        for i in range(8):
            a(f"s_waitcnt lgkmcnt({7-i})")
            a(f"buffer_store_dwordx4 {vr(64+4*i,4)}, v17, s[12:15], s60 offen{SF('ut')}")
            if i < 7: a("s_add_u32 s60, s60, 32768")
        a.label("LA_hnb")
    for q in range(8):
        a("s_barrier")
        a(f"ds_read_b64_tr_b16 {vr(24+2*q,2)}, v5 offset:{TAB_OFF + YS_REL + 512*q}")
        a("s_waitcnt lgkmcnt(0)")
        a(f"buffer_store_dwordx2 {vr(24+2*q,2)}, v7, s[8:11], s50 offen{SF('ya')}")
        if q < 7: a("s_add_u32 s50, s50, 655360")
        if q == 1: blk()
    stamp(a, 6)
    stamp_flush(a, 0)
    a("s_endpgm")

CH_W = 20480
CH_BYTES = 36864
NBUF = 4
def phi2(a, x, t):
    a(f"v_pk_mul_f32 {vr(t,2)}, {vr(x,2)}, s[60:61]")
    a(f"v_max_f32_e64 v{x}, s62, v{x}")
    a(f"v_exp_f32 v{t}, v{t} clamp")
    a(f"v_exp_f32 v{t+1}, v{t+1} clamp")
    a(f"v_max_f32_e64 v{x+1}, s62, v{x+1}")
    a(f"v_pk_add_f32 {vr(x,2)}, {vr(x,2)}, {vr(t,2)}")

RED_OFF = 2*CH_BYTES
def gen_G1(a):
    a.label("LG1")
    a("s_and_b32 s46, s44, 3")
    a("s_lshl_b32 s46, s46, 2")
    a("s_and_b32 s47, s45, 3")
    a("s_add_u32 s46, s46, s47")
    a("s_lshr_b32 s47, s45, 2")
    a("s_lshr_b32 s48, s44, 2")
    a("s_cmp_ge_u32 s47, 4")
    a("s_cselect_b32 s63, 1, 0")
    a("s_cbranch_scc1 LG1_q0")
    a("s_lshl_b32 s49, s48, 2")
    a("s_add_u32 s49, s49, s47")
    a("s_mul_i32 s50, s49, 160")
    a("s_add_u32 s50, s50, 1280")
    a("s_mov_b32 s51, 1120")
    a("s_branch LG1_c")
    a.label("LG1_q0")
    a("s_lshl_b32 s49, s48, 1")
    a("s_add_u32 s49, s49, s47")
    a("s_sub_u32 s49, s49, 4")
    a("s_mul_i32 s50, s49, 320")
    a("s_mov_b32 s51, 0")
    a.label("LG1_c")
    a("s_cmp_ge_u32 s3, 4")
    a("s_cbranch_scc1 LG1_load")
    a("v_and_b32 v2, 15, v1")
    a("v_lshrrev_b32 v3, 4, v1")
    a("s_lshl_b32 s52, s46, 2")
    a("s_add_u32 s52, s52, s3")
    a("s_mul_i32 s53, s52, 40960")
    ACC, AR, BR, NBR, PD = 16, 96, 112, 10, 6
    a("v_bfe_u32 v5, v1, 2, 2")
    a("v_lshl_add_u32 v5, v3, 3, v5")
    a("v_mul_u32_u24 v5, 320, v5")
    a("v_and_b32 v6, 3, v1")
    a("v_lshl_add_u32 v5, v6, 3, v5")
    a("v_and_b32 v6, 1, v3")
    a("v_lshlrev_b32 v6, 5, v6")
    a("v_add_u32 v4, v5, v6")
    a("v_sub_u32 v5, v5, v6")
    a("v_add_u32 v5, 32, v5")
    a("v_lshrrev_b32 v6, 1, v2")
    a("v_xor_b32 v6, v6, v3")
    a("v_lshlrev_b32 v6, 4, v6")
    a("v_lshl_add_u32 v6, v2, 7, v6")
    a("s_lshl_b32 s54, s3, 12")
    a(f"s_add_u32 s54, s54, {CH_W}")
    a("v_add_u32 v6, s54, v6")
    a("v_xor_b32 v7, 64, v6")
    for i in range(4): a(f"v_mov_b32 v{8+i}, v{4+i}")
    for i in range(80): a(f"v_mov_b32 v{ACC+i}, 0")
    a(f"s_mov_b32 s60, {LOG2E}")
    a(f"s_mov_b32 s61, {LOG2E}")
    a(f"s_mov_b32 s62, {EPS}")
    a("s_mov_b32 s55, 0")
    a("s_mov_b32 s56, 0")
    a("s_waitcnt lgkmcnt(0)")
    stamp(a, 1)
    def rdB(n, h):
        ks, T = divmod(n, 10)
        off = ks*32*320 + (T & ~1)*32
        b = BR + 4*(n % NBR)
        a(f"ds_read_b64_tr_b16 {vr(b+2*h,2)}, v{8+(T&1)} offset:{off+1280*h}")
    def rdA(ks, rt):
        a(f"ds_read_b128 {vr(AR+8*ks+4*rt,4)}, v{10+ks} offset:{2048*rt}")
    a("s_barrier")
    rdB(0, 0); rdA(0, 0); rdB(0, 1); rdA(0, 1)
    for n in range(1, PD): rdB(n, 0); rdB(n, 1)
    stamp(a, 2)
    a("s_cmp_eq_u32 s63, 1")
    a("s_cbranch_scc1 LG1_qloop")
    for variant in ("kv", "q"):
        a(".p2align 3")
        a.label(f"LG1_{variant}loop")
        for n in range(20):
            ks, T = divmod(n, 10)
            cnt = 2*(PD-1)
            if (n % 10) > 10 - PD: cnt += 2
            a(f"s_waitcnt lgkmcnt({cnt})")
            if 'nopal' in EXP: a("s_nop 0")
            b = BR + 4*(n % NBR)
            for rt in range(2):
                ac = ACC + 8*T + 4*rt
                ab = AR + 8*ks + 4*rt
                if variant == "kv":
                    a(f"v_mfma_f32_16x16x32_bf16 {vr(ac,4)}, {vr(ab,4)}, {vr(b,4)}, {vr(ac,4)}")
                else:
                    a(f"v_mfma_f32_16x16x32_bf16 {vr(ac,4)}, {vr(b,4)}, {vr(ab,4)}, {vr(ac,4)}")
                m = (n + PD) % 20
                if rt == 0 and n == 20 - PD:
                    a(f"s_add_u32 s56, s56, {CH_BYTES}")
                    a(f"s_cmp_eq_u32 s56, {NBUF*CH_BYTES}")
                    a("s_cselect_b32 s56, 0, s56")
                    a("s_add_u32 s55, s55, 1")
                    for i in range(4): a(f"v_add_u32 v{8+i}, s56, v{4+i}")
                    a("s_barrier")
                rdB(m, rt)
                if n % 10 == 10 - PD: rdA(1 - ks, rt)
        a("s_cmp_lt_u32 s55, 10")
        a(f"s_cbranch_scc1 LG1_{variant}loop")
        a("s_waitcnt lgkmcnt(0)")
        stamp(a, 4)
        if variant == "kv":
            for T in range(5):
                for rt in range(2):
                    ac = ACC + 8*T + 4*rt
                    phi2(a, ac, 176); phi2(a, ac+2, 178)
                    a(f"v_cvt_pk_bf16_f32 v{96+4*T+2*rt}, v{ac}, v{ac+1}")
                    a(f"v_cvt_pk_bf16_f32 v{96+4*T+2*rt+1}, v{ac+2}, v{ac+3}")
            for T in range(5, 10):
                for rt in range(2):
                    ac = ACC + 8*T + 4*rt
                    a(f"v_cvt_pk_bf16_f32 v{96+4*T+2*rt}, v{ac}, v{ac+1}")
                    a(f"v_cvt_pk_bf16_f32 v{96+4*T+2*rt+1}, v{ac+2}, v{ac+3}")
            for i in range(4): a(f"v_mov_b32 v{136+i}, 0x3f803f80")
            a("v_mul_u32_u24 v5, 80, v2")
            a("v_lshl_add_u32 v5, v3, 4, v5")
            a("s_mul_i32 s52, s3, 6720")
            a(f"s_add_u32 s52, s52, {RED_OFF}")
            a("v_add_u32 v5, s52, v5")
            pairs = [(bt, at) for bt in range(5) for at in range(5) if abs(bt - at) <= 1]
            for i, (bt, at) in enumerate(pairs):
                a(f"v_mfma_f32_16x16x32_bf16 {vr(140+4*i,4)}, {vr(96+4*bt,4)}, {vr(116+4*at,4)}, 0")
            for bt in range(5):
                a(f"v_mfma_f32_16x16x32_bf16 {vr(192+4*bt,4)}, {vr(96+4*bt,4)}, v[136:139], 0")
            for i, (bt, at) in enumerate(pairs):
                m = 0
                for l in range(64):
                    e = 16*at + (l & 15); d = 16*bt + 4*(l >> 4)
                    if e // 20 == d // 20: m |= 1 << l
                a(f"s_mov_b32 exec_lo, {m & 0xffffffff:#x}")
                a(f"s_mov_b32 exec_hi, {m >> 32:#x}")
                a(f"ds_write_b128 v5, {vr(140+4*i,4)} offset:{4*(320*at + 16*bt)}")
            for bt in range(5):
                byx = {}
                for g in range(4):
                    h = (16*bt + 4*g) // 20
                    x, j = divmod(20*h + 20, 16)
                    byx.setdefault(x, 0)
                    byx[x] |= 1 << (16*g + j)
                for x, m in byx.items():
                    a(f"s_mov_b32 exec_lo, {m & 0xffffffff:#x}")
                    a(f"s_mov_b32 exec_hi, {m >> 32:#x}")
                    a(f"ds_write_b128 v5, {vr(192+4*bt,4)} offset:{4*(320*x + 16*bt)}")
            a("s_mov_b64 exec, -1")
            a("s_branch LG1_red")
        else:
            srd(a, 8, P_WS, 64*40*1024, WS_PQ)
            a("v_lshrrev_b32 v5, 1, v3")
            a("v_lshlrev_b32 v5, 9, v5")
            a("v_lshl_add_u32 v5, v2, 4, v5")
            a("v_and_b32 v6, 1, v3")
            a("v_lshl_add_u32 v5, v6, 3, v5")
            a("s_mul_i32 s55, s49, 10240")
            a("s_add_u32 s55, s55, s53")
            for T in range(10):
                for rt in range(2):
                    ac = ACC + 8*T + 4*rt
                    phi2(a, ac, 176); phi2(a, ac+2, 178)
                    a(f"v_cvt_pk_bf16_f32 v{ac}, v{ac}, v{ac+1}")
                    a(f"v_cvt_pk_bf16_f32 v{ac+1}, v{ac+2}, v{ac+3}")
                    a(f"buffer_store_dwordx2 {vr(ac,2)}, v5, s[8:11], s55 offen offset:{(T % 4)*1024 + rt*256}{SF('pq')}")
                if T % 4 == 3: a("s_add_u32 s55, s55, 4096")
            stamp(a, 5)
            stamp_flush(a, 0)
            a("s_endpgm")
    a.label("LG1_load")
    a("s_sub_u32 s52, s3, 4")
    a("s_and_b32 s53, s45, 3")
    a("s_mul_i32 s53, s53, 5")
    a("s_lshr_b32 s53, s53, 1")
    a("s_mul_i32 s54, s47, 5")
    a("s_add_u32 s54, s54, 1")
    a("s_mul_i32 s54, s54, 43")
    a("s_lshr_b32 s54, s54, 7")
    a("s_add_u32 s53, s53, s54")
    a("s_add_u32 s53, s53, s44")
    a("s_mul_i32 s54, s53, 26")
    a("s_lshr_b32 s54, s54, 8")
    a("s_mul_i32 s54, s54, 10")
    a("s_sub_u32 s64, s53, s54")
    if 'norot' in EXP: a("s_mov_b32 s64, 0")
    a("v_lshrrev_b32 v2, 3, v1")
    a("v_lshrrev_b32 v3, 1, v2")
    a("v_and_b32 v4, 7, v1")
    a("v_xor_b32 v3, v3, v4")
    a("v_mul_u32_u24 v2, 1280, v2")
    a("v_lshl_add_u32 v13, v3, 4, v2")
    a("v_xor_b32 v14, 64, v13")
    a("v_add_u32 v14, 10240, v14")
    a("s_mul_i32 s65, s46, 163840")
    a("s_mul_i32 s54, s52, 40960")
    a("s_add_u32 s65, s65, s54")
    a("s_mul_i32 s53, s52, 320")
    a("v_add_u32 v2, s53, v1")
    a("s_mov_b32 s56, 0")
    for i in range(5):
        a(f"v_add_u32 v3, {64*i}, v2")
        a("v_mul_u32_u24 v4, 3277, v3")
        a("v_lshrrev_b32 v4, 16, v4")
        a("v_mul_u32_u24 v5, 20, v4")
        a("v_sub_u32 v5, v3, v5")
        a("v_lshrrev_b32 v6, 2, v4")
        a("v_and_b32 v6, 2, v6")
        a("v_xor_b32 v5, v5, v6")
        a("v_cmp_le_u32 vcc, 10, v5")
        a("v_mul_u32_u24 v4, 3840, v4")
        a("v_lshl_add_u32 v4, v5, 4, v4")
        a("v_mov_b32 v6, s51")
        a("v_cndmask_b32 v6, 0, v6, vcc")
        a(f"v_add_u32 v{8+i}, v4, v6")
    a("s_mul_i32 s54, s52, 5120")
    a("s_lshl_b32 s53, s52, 12")
    a(f"s_add_u32 s53, s53, {CH_W}")
    a("s_lshl_b32 s57, s49, 2")
    a("v_mov_b32 v16, 1")
    a("v_mov_b32 v17, 0")
    a("s_add_u32 s58, s63, s52")
    a("s_waitcnt lgkmcnt(0)")
    srd(a, 4, P_W, 640*3840)
    srd(a, 68, P_X, 2048*1280)
    srd(a, 12, P_DBG, 256)
    a("s_mul_i32 s55, s49, 6720")
    a(f"s_add_u32 s55, s55, {WS_KV}")
    srd(a, 8, P_WS, 6720, "s55")
    def dma(ch):
        buf = ch % NBUF
        a(f"s_mul_i32 s59, s64, {64*3840}")
        a("s_add_u32 s59, s59, s50")
        a("s_lshl_b32 s66, s64, 7")
        a("s_add_u32 s66, s66, s65")
        a("s_add_u32 s67, s66, 20480")
        for i in range(4):
            a(f"s_add_u32 m0, s53, {buf*CH_BYTES + 1024*i}")
            a("s_nop 0")
            a(f"buffer_load_dwordx4 v{13+(i&1)}, s[68:71], {'s66' if i < 2 else 's67'} offen lds")
        for i in range(5):
            a(f"s_add_u32 m0, s54, {buf*CH_BYTES + 1024*i}")
            a("s_nop 0")
            a(f"buffer_load_dwordx4 v{8+i}, s[4:7], s59 offen lds")
        a("s_add_u32 s64, s64, 1")
        a("s_cmp_eq_u32 s64, 10")
        a("s_cselect_b32 s64, 0, s64")
    stamp(a, 1)
    dma(0)
    a("s_cmp_lg_u32 s58, 0")
    a("s_cbranch_scc1 LG1_l0")
    a("s_mov_b64 exec, 1")
    a("buffer_atomic_add v16, v17, s[12:15], s57 offen sc0")
    a("s_mov_b64 exec, -1")
    a.label("LG1_l0")
    dma(1)
    stamp(a, 2)
    for ch in range(11):
        if ch < 10: a(f"s_waitcnt vmcnt({9 if ch < 9 else 0})")
        if ch == 0: stamp(a, 3)
        if ch == 6: stamp(a, 4)
        a("s_barrier")
        if ch == 0:
            a("s_cmp_lg_u32 s58, 0")
            a("s_cbranch_scc1 LG1_l1")
            a("v_readfirstlane_b32 s56, v16")
            a("s_nop 0")
            a("s_cmp_eq_u32 s56, 0")
            a("s_cselect_b32 s56, 1, 0")
            a("s_cbranch_scc0 LG1_l1")
            a("v_lshlrev_b32 v18, 4, v1")
            for i in range(4): a(f"v_mov_b32 v{20+i}, 0")
            a("s_mov_b32 s66, 4096")
            for i in range(7):
                so = "0" if i < 4 else "s66"
                a(f"buffer_store_dwordx4 v[20:23], v18, s[8:11], {so} offen offset:{1024*(i%4)} sc0 sc1")
            a.label("LG1_l1")
        if ch == 2:
            a("s_cmp_eq_u32 s56, 0")
            a("s_cbranch_scc1 LG1_l2")
            a("v_mov_b32 v16, 1")
            a("s_mov_b64 exec, 1")
            a("buffer_atomic_add v16, v17, s[12:15], s57 offen offset:128")
            a("s_mov_b64 exec, -1")
            a.label("LG1_l2")
        if ch + 2 < 10 and 'nodma' not in EXP: dma(ch + 2)
    a("s_cmp_eq_u32 s63, 1")
    a("s_cbranch_scc1 Lend")
    a("s_cmp_lg_u32 s58, 0")
    a("s_cbranch_scc1 LG1_red2")
    a("s_mov_b32 s67, 0")
    a("s_mov_b64 exec, 1")
    a.label("LG1_poll")
    a("s_add_u32 s67, s67, 1")
    a("s_cmp_ge_u32 s67, 0x40000")
    a("s_cbranch_scc1 LG1_red2")
    a("buffer_load_dword v16, v17, s[12:15], s57 offen offset:128 sc0 sc1")
    a("s_waitcnt vmcnt(0)")
    a("v_readfirstlane_b32 s56, v16")
    a("s_nop 0")
    a("s_cmp_eq_u32 s56, 0")
    a("s_cbranch_scc0 LG1_red2")
    a("s_sleep 2")
    a("s_branch LG1_poll")
    a.label("LG1_red")
    a("s_mul_i32 s55, s49, 6720")
    a(f"s_add_u32 s55, s55, {WS_KV}")
    srd(a, 8, P_WS, 6720, "s55")
    a.label("LG1_red2")
    a("s_mov_b64 exec, -1")
    a("v_lshlrev_b32 v2, 2, v0")
    a(f"v_add_u32 v3, {RED_OFF}, v2")
    a("s_waitcnt lgkmcnt(0)")
    stamp(a, 5)
    a("s_barrier")
    stamp(a, 6)
    for n in range(4):
        for w in range(4):
            a(f"ds_read_b32 v{8+4*n+w}, v3 offset:{6720*w + 2048*n}")
    a("s_mov_b32 s66, 4096")
    for n in range(4):
        a(f"s_waitcnt lgkmcnt({12-4*n})")
        a(f"v_add_f32 v{8+4*n}, v{8+4*n}, v{9+4*n}")
        a(f"v_add_f32 v{10+4*n}, v{10+4*n}, v{11+4*n}")
        a(f"v_add_f32 v{8+4*n}, v{8+4*n}, v{10+4*n}")
        so = "0" if n < 2 else "s66"
        a(f"buffer_atomic_add_f32 v{8+4*n}, v2, s[8:11], {so} offen offset:{2048*(n%2)}")
    stamp_flush(a, 0)
    a("s_endpgm")

KVI = 81920 + 64
HST = 1744
def gen_G2(a):
    a.label("LG2")
    a.vm_reset(); a.lds_reset()
    a("v_lshlrev_b32 v2, 4, v1")
    a("s_and_b32 s46, s44, 3")
    a("s_lshl_b32 s46, s46, 2")
    a("s_and_b32 s47, s45, 3")
    a("s_add_u32 s46, s46, s47")
    a("s_lshr_b32 s47, s44, 2")
    a("s_mul_i32 s47, s47, 5")
    a("s_lshr_b32 s48, s45, 2")
    a("s_add_u32 s47, s47, s48")
    a("s_and_b32 s48, s3, 3")
    a("s_lshr_b32 s49, s3, 2")
    a("v_lshrrev_b32 v3, 4, v1")
    a("v_bfe_u32 v4, v1, 2, 2")
    a("v_xor_b32 v5, v4, v3")
    a("v_lshrrev_b32 v6, 1, v5")
    a("v_lshl_add_u32 v6, v3, 1, v6")
    a("v_mul_u32_u24 v6, 1280, v6")
    a("v_and_b32 v5, 1, v5")
    a("v_lshl_add_u32 v6, v5, 6, v6")
    a("v_and_b32 v5, 3, v1")
    a("v_lshl_add_u32 v8, v5, 4, v6")
    a("s_mul_i32 s56, s48, 40")
    a("s_mul_i32 s57, s49, 320")
    a("s_add_u32 s56, s56, s57")
    a("s_lshl_b32 s57, s56, 7")
    a("s_mul_i32 s55, s56, 1280")
    a("s_lshl_b32 s56, s47, 7")
    a("s_add_u32 s55, s55, s56")
    a("s_mul_i32 s50, s3, 6720")
    a(f"s_add_u32 s51, s50, {WS_KV}")
    a("s_mov_b32 s66, 3360")
    a("s_waitcnt lgkmcnt(0)")
    stamp(a, 1)
    srd(a, 12, P_WO, 640*1280)
    wt = {}
    def dmaw(stage, i):
        a(f"s_add_u32 m0, s57, {1024*i + 20480*stage}")
        a(f"s_add_u32 s56, s55, {10240*i + 204800*stage}")
        return a.vm(f"buffer_load_dwordx4 v8, s[12:15], s56 offen lds")
    NPRE = 10 if 'g2pre10' in EXP else 5 if 'g2pre5' in EXP else 0
    for i in range(NPRE): wt[i // 5] = dmaw(i // 5, i % 5)
    a(f"s_mul_i32 s50, s3, {4*HST}")
    a(f"s_add_u32 s50, s50, {KVI-40}")
    for hf in range(2):
        a(f"v_add_u32 v7, {64*hf}, v1")
        a("v_mul_u32_u24 v6, 205, v7")
        a("v_lshrrev_b32 v6, 10, v6")
        a("v_mul_u32_u24 v6, 40, v6")
        a("v_lshl_add_u32 v7, v7, 3, v6")
        a(f"v_add_u32 v{9+hf}, s50, v7")
    srd(a, 8, P_WS, 6720, "s51")
    KVR = 16
    kt = [None]*8
    for i in (0, 2, 4, 6, 1, 3, 5, 7):
        h4, hf = divmod(i, 2)
        so = "0" if h4 < 2 else "s66"
        if i == 1: a("s_mov_b32 exec_hi, 0x1ff")
        kt[i] = a.vm(f"buffer_load_dwordx4 {vr(KVR+4*i,4)}, v2, s[8:11], {so} offen offset:{1680*(h4%2) + 1024*hf}")
    a("s_mov_b32 exec_hi, -1")
    srd(a, 4, P_WS, 64*40*1024, WS_PQ)
    a("s_lshl_b32 s52, s46, 2")
    a("s_add_u32 s52, s52, s48")
    a("s_mul_i32 s53, s52, 40960")
    a("s_mul_i32 s54, s49, 20480")
    a("s_add_u32 s53, s53, s54")
    PQ = 96
    ptok = []
    def loadpq(c):
        ptok.append(a.vm(f"buffer_load_dwordx4 {vr(PQ+4*c,4)}, v2, s[4:7], s53 offen offset:{1024*(c%4)}"))
        if c % 4 == 3: a("s_add_u32 s53, s53, 4096")
    a("v_mov_b32 v48, 0")
    a("v_mov_b32 v49, 0")
    for h4 in range(4): a.lds(f"ds_write_b64 v9, v[48:49] offset:{(HST+8)*h4}")
    a("s_mov_b32 exec_hi, 0x3fff")
    for h4 in range(4): a.lds(f"ds_write_b64 v10, v[48:49] offset:{(HST+8)*h4}")
    a("s_mov_b32 exec_hi, -1")
    a("v_bfe_u32 v6, v1, 3, 2")
    a("v_lshl_add_u32 v6, v6, 2, v5")
    a("v_bfe_u32 v7, v1, 2, 1")
    a("v_lshl_add_u32 v7, v6, 1, v7")
    a("v_min_u32 v7, 20, v7")
    a("v_mul_u32_u24 v7, 80, v7")
    a("v_lshrrev_b32 v6, 5, v1")
    a("v_lshl_add_u32 v7, v6, 4, v7")
    a(f"s_mul_i32 s58, s49, {16*HST}")
    a(f"s_add_u32 s58, s58, {KVI}")
    a("v_add_u32 v13, s58, v7")
    a("v_lshlrev_b32 v6, 1, v6")
    a("v_or_b32 v6, s49, v6")
    a("v_xor_b32 v6, v6, v4")
    a("v_lshlrev_b32 v6, 6, v6")
    a("v_lshl_add_u32 v6, v4, 8, v6")
    a("v_and_b32 v7, 1, v1")
    a("v_lshl_add_u32 v6, v7, 5, v6")
    a("v_and_b32 v7, 16, v1")
    a("v_add_u32 v6, v6, v7")
    a("v_and_b32 v7, 2, v1")
    a("v_lshl_add_u32 v6, v7, 2, v6")
    a("s_mul_i32 s58, s49, 40960")
    a("v_add_u32 v15, s58, v6")
    a("v_xor_b32 v14, 64, v15")
    a(f"s_mov_b32 s62, {EPS}")
    for c in range(3): loadpq(c)
    stamp(a, 2)
    for i in (0, 2, 4, 6, 1, 3, 5, 7):
        a.vm_wait(kt[i])
        b = KVR + 4*i
        a(f"v_cvt_pk_bf16_f32 v{b}, v{b}, v{b+1}")
        a(f"v_cvt_pk_bf16_f32 v{b+1}, v{b+2}, v{b+3}")
        if i == 1: a("s_mov_b32 exec_hi, 0x1ff")
        a.lds(f"ds_write_b64 v{9+i%2}, {vr(b,2)} offset:{(HST+8)*(i//2)+40}")
    a("s_mov_b32 exec_hi, -1")
    for c in range(3, 7): loadpq(c)
    stamp(a, 3)
    a("s_waitcnt lgkmcnt(0)")
    a("s_barrier")
    stamp(a, 4)
    a.lds_reset()
    DD, ND = 16, 3
    OO = 64
    RC = 11
    ACC = 176
    KF = 208
    WF = 224
    ktok = {}; wtok = {}
    def issueK(n):
        hl, cc = divmod(n, 2)
        ktok[n] = a.lds(f"ds_read_b128 {vr(KF+4*(n%4),4)}, v13 offset:{hl*HST + cc*32}")
    def issueW(n, h):
        st, tau = divmod(n, 2)
        b = WF + 4*(n % 8)
        wtok[n] = a.lds(f"ds_read_b64_tr_b16 {vr(b+2*h,2)}, v{14+tau} offset:{st*2048+1024*h}")
    def om(n):
        hl, cc = divmod(n, 2)
        d = DD + 16*(hl % ND)
        c0 = (5*hl) >> 2
        a.vm_wait(ptok[c0+cc])
        a.lds_wait(ktok[n])
        c = "0" if cc == 0 else vr(d, 16)
        a(f"v_mfma_f32_32x32x16_bf16 {vr(d,16)}, {vr(KF+4*(n%4),4)}, {vr(PQ+4*(c0+cc),4)}, {c}")
    def ovalu(hl):
        d = DD + 16*(hl % ND)
        rc = RC + (hl % 2)
        pre = lambda h: [f"v_add_f32 v{RC+h%2}, s62, v{DD+16*(h%ND)+10}", f"v_rcp_f32 v{RC+h%2}, v{RC+h%2}"]
        L = pre(0) if hl == 0 else []
        for i in range(5):
            if i == 4 and hl < 15: L += pre(hl + 1)
            L.append(f"v_mul_f32 v{d+2*i}, v{d+2*i}, v{rc}")
            L.append(f"v_mul_f32 v{d+2*i+1}, v{d+2*i+1}, v{rc}")
            L.append(f"v_cvt_pk_bf16_f32 v{OO + (5*hl+i) % 32}, v{d+2*i}, v{d+2*i+1}")
        return L
    def gm(n):
        st, tau = divmod(n, 2)
        a.lds_wait(wtok[n])
        c = "0" if st == 0 else vr(ACC+16*tau, 16)
        a(f"v_mfma_f32_32x32x16_bf16 {vr(ACC+16*tau,16)}, {vr(WF+4*(n%8),4)}, {vr(OO+4*(st%8),4)}, {c}")
    later = [("w", 0, i) for i in range(5) if NPRE < 5] + [("p", c, 0) for c in range(7, 12)] + [("w", 1, i) for i in range(5) if NPRE < 10] + [("p", c, 0) for c in range(12, 20)]
    def more():
        if later:
            kind, x, y = later.pop(0)
            if 'g2nold' in EXP:
                if kind == "p": ptok.append(0)
                else: wt[x] = 0
            elif kind == "p": loadpq(x)
            else: wt[x] = dmaw(x, y)
    for n in range(4): issueK(n)
    for _ in range(2): more()
    G0 = 6 if NPRE == 0 else 3
    gn = 0; wq = [(n, h) for n in range(40) for h in range(2)]
    gorder = list(range(34)) + [34, 35, 36, 38, 37, 39] if False else list(range(33)) + [34, 33, 36, 38, 35, 37, 39]
    wq = [(n, h) for n in gorder for h in range(2)]
    wdone = 0; cons = set(range(-8, 0))
    XB = KVI - 64
    TB = 10 if NPRE == 0 else 8
    for t in range(19):
        if t == G0 - 1 and NPRE < 5:
            a.vm_wait(wt[0]); a("s_barrier")
        if t == TB and NPRE < 10:
            a.vm_wait(wt[1]); a("s_barrier")
        if t == 17:
            a("s_barrier")
        M = []
        if t < 16: M += [("o", 2*t), ("o", 2*t+1)]
        avail = ((5*(t-2)) // 4) if t >= G0 else 0
        k = 0
        while gn < 40 and gorder[gn] // 2 < avail and (k < 3 or t >= 16):
            M.append(("g", gorder[gn])); gn += 1; k += 1
        if len(M) >= 4 and t < 16: M = [M[0], M[2], M[1]] + M[3:]
        F = list(ovalu(t-2)) if 2 <= t < 18 and 'g2novalu' not in EXP else []
        per = -(-len(F) // max(1, len(M)))
        for j, (kind, n) in enumerate(M):
            if kind == "o":
                om(n)
                if n + 4 < 32 and False: pass
            else:
                assert n < 20 or t >= TB
                while n not in wtok or (wq and wq[0][0] == n): issueW(*wq.pop(0))
                gm(n); wdone += 1
            if kind == "o" and n >= 1 and n + 3 < 32: issueK(n + 3)
            if t >= G0 - 1:
                for _ in range(2):
                    if wq and gorder.index(wq[0][0]) < wdone + 6 and (wq[0][0] - 8) in cons and (wq[0][0] < 20 or t >= TB): issueW(*wq.pop(0))
            if kind == "g": cons.add(n)
            for l in F[j*per:(j+1)*per]: a(l)
            more()
            if t == 18 and n == 39:
                for i in range(4): a.lds(f"ds_write_b128 v3, {vr(ACC+4*i,4)} offset:{1024*i}")
        if t == 12:
            a("s_lshl_b32 s50, s3, 12")
            a(f"s_add_u32 s50, s50, {XB}")
            a("v_add_u32 v3, s50, v2")
            a("s_xor_b32 s51, s3, 4")
            a("s_lshl_b32 s51, s51, 12")
            a(f"s_add_u32 s51, s51, {XB}")
            a("v_add_u32 v4, s51, v2")
            srd(a, 8, P_OUT, 2048*2560)
            a("v_and_b32 v5, 31, v1")
            a("v_mul_u32_u24 v5, 2560, v5")
            a("v_lshrrev_b32 v6, 5, v1")
            a("v_lshl_add_u32 v5, v6, 5, v5")
            a("s_mul_i32 s59, s52, 81920")
            a("s_lshl_b32 s54, s47, 7")
            a("s_add_u32 s59, s59, s54")
            a("s_lshl_b32 s54, s49, 6")
            a("s_add_u32 s59, s59, s54")
            a("s_add_u32 s59, s59, 1280")
    assert gn == 40 and not later and not wq
    stamp(a, 5)
    a("s_waitcnt lgkmcnt(0)")
    a("s_barrier")
    for i in range(4): a(f"ds_read_b128 {vr(32+4*i,4)}, v4 offset:{1024*i}")
    K = ACC + 16
    for i in range(4):
        a(f"s_waitcnt lgkmcnt({3-i})")
        a(f"v_pk_add_f32 {vr(K+4*i,2)}, {vr(K+4*i,2)}, {vr(32+4*i,2)}")
        a(f"v_pk_add_f32 {vr(K+2+4*i,2)}, {vr(K+2+4*i,2)}, {vr(34+4*i,2)}")
        a(f"v_cvt_pk_bf16_f32 v{48+2*i}, v{K+4*i}, v{K+1+4*i}")
        a(f"v_cvt_pk_bf16_f32 v{49+2*i}, v{K+2+4*i}, v{K+3+4*i}")
        if i % 2 == 1:
            a(f"buffer_store_dwordx4 {vr(48+4*(i//2),4)}, v5, s[8:11], s59 offen offset:{16*(i//2)}{SF('ob')}")
    stamp_flush(a, 0)
    a("s_endpgm")

def kd(name):
    return f""".p2align 6
.amdhsa_kernel {name}
  .amdhsa_next_free_vgpr 256
  .amdhsa_next_free_sgpr 96
  .amdhsa_accum_offset 256
  .amdhsa_group_segment_fixed_size 0
  .amdhsa_kernarg_size 104
  .amdhsa_user_sgpr_count 2
  .amdhsa_user_sgpr_kernarg_segment_ptr 1
  .amdhsa_system_sgpr_workgroup_id_x 1
.end_amdhsa_kernel
"""

def main(out):
    hdr = open(f"cdna_kernels/{NAME}.s.ref").read().split("; Override launch")[0]
    a = Asm()
    a(".text")
    a.label("Lcode_start")
    a(".globl k1_kernel\n.p2align 8\n.type k1_kernel,@function")
    a.label("k1_kernel")
    prologue(a, "1")
    a("s_cmp_lt_u32 s45, 24")
    a("s_cbranch_scc1 LG1")
    a("s_lshl_b32 s42, s44, 5")
    a("s_sub_u32 s46, s45, 24")
    a("s_lshl_b32 s46, s46, 2")
    a("s_add_u32 s42, s42, s46")
    a("s_mov_b32 s63, 1")
    a("s_branch LA")
    gen_G1(a)
    a.label("Lend")
    a("s_endpgm")
    gen_A(a)
    a(".globl k2_kernel\n.p2align 8\n.type k2_kernel,@function")
    a.label("k2_kernel")
    prologue(a, "2")
    a("s_cmp_lt_u32 s45, 20")
    a("s_cbranch_scc1 LG2")
    a("s_mul_i32 s42, s44, 48")
    a("s_sub_u32 s46, s45, 20")
    a("s_lshl_b32 s46, s46, 2")
    a("s_add_u32 s42, s42, s46")
    a("s_add_u32 s42, s42, 256")
    a("s_mov_b32 s63, 0")
    a("s_branch LA")
    gen_G2(a)
    a.label("Lcode_end")
    a.lines, nfix = fix_hazards(a.lines)
    print("hazard nops inserted:", nfix)
    for m in check_hazards(a.lines): print(m)
    txt = hdr
    txt += f"; @launch kernel=k1_kernel grid=(256,1,1) block=(512,1,1) lds={LDS_BYTES}\n"
    txt += f"; @launch kernel=k2_kernel grid=(256,1,1) block=(512,1,1) lds={LDS_BYTES}\n"
    txt += '.amdgcn_target "amdgcn-amd-amdhsa--gfx950"\n'
    txt += a.text()
    txt += '.section .rodata,"a"\n' + kd("k1_kernel") + kd("k2_kernel")
    open(out, "w").write(txt)
if len(sys.argv) > 2 and sys.argv[2] == "stamps": STAMPS = True
main(sys.argv[1] if len(sys.argv) > 1 else f"cdna_kernels/{NAME}.s")
```

```python
import sys, struct
from asmlib import *
NAME = "concat_heads__ssm_conv_s4d__linear_attn_block__prompt"
def f2u(x): return struct.unpack("<I", struct.pack("<f", x))[0]
LOG2E = f2u(1.4426950408889634)
INV2PI = f2u(0.15915494309189535)
EPS = f2u(1e-6)
LDS_BYTES = 147456
WS_PQ = 0
WS_KV = 0x300000
P_U, P_LA, P_AI, P_CR, P_CI, P_LDT, P_DSK, P_X = [16 + 2*i for i in range(8)]
P_W, P_WO, P_OUT, P_DBG = 32, 34, 36, 38
P_WS = 40
S_W = 3

def srd(a, d, p, size, off=None):
    if off is None:
        a(f"s_mov_b32 s{d}, s{p}")
        a(f"s_mov_b32 s{d+1}, s{p+1}")
    else:
        a(f"s_add_u32 s{d}, s{p}, {off}")
        a(f"s_addc_u32 s{d+1}, s{p+1}, 0")
    a(f"s_mov_b32 s{d+2}, {size}")
    a(f"s_mov_b32 s{d+3}, 0x20000")

def prologue(a, tag):
    a("s_cmp_ge_u32 s2, 256")
    a("s_cbranch_scc1 Lend")
    if STAMPS:
        for i in range(1, 8): a(f"s_mov_b32 s{72+2*i}, 0")
        a(f"s_mov_b32 s43, {0 if tag == '1' else 0x40000}")
    stamp(a, 0)
    refpt(a, "start" + tag)
    a("s_load_dwordx16 s[16:31], s[0:1], 0")
    a("s_load_dwordx8 s[32:39], s[0:1], 64")
    a("s_load_dwordx2 s[40:41], s[0:1], 96")
    a("v_lshrrev_b32 v2, 6, v0")
    a("v_and_b32 v1, 63, v0")
    a("s_cmp_ge_u32 s2, 16")
    a(f"s_cbranch_scc1 Lnopf_{tag}")
    a("s_getpc_b64 s[64:65]")
    a.label(f"Lpc_{tag}")
    a(f"s_sub_u32 s64, s64, Lpc_{tag}-Lcode_start")
    a("s_subb_u32 s65, s65, 0")
    a("v_lshlrev_b32 v3, 7, v0")
    a("v_min_u32 v3, Lcode_end-Lcode_start-4, v3")
    a("global_load_dword v255, v3, s[64:65]")
    a.label(f"Lnopf_{tag}")
    a(f"v_readfirstlane_b32 s{S_W}, v2")
    a("s_and_b32 s44, s2, 7")
    a("s_lshr_b32 s45, s2, 3")

STAMPS = False
EXP = set(sys.argv[3:])
SF = lambda k: (" sc1" if k + "sc1" in EXP else " nt" if k + "nt" in EXP else " sc0 sc1" if k + "sc01" in EXP else "")
CLK = "s_memtime" if "cyc" in EXP else "s_memrealtime"
WS_ST = 0x380000
def stamp(a, idx, waves=None):
    if not STAMPS: return
    a(f"{CLK} s[{72+2*idx}:{73+2*idx}]")
    if idx > 0:
        a("s_waitcnt lgkmcnt(0)")
        a.lds_done = a.lds_issued
def stamp_flush(a, kern, n=8):
    if not STAMPS: return
    a("s_waitcnt vmcnt(0)")
    a(f"{CLK} s[{72+2*(n-1)}:{73+2*(n-1)}]")
    a("s_waitcnt lgkmcnt(0)")
    a("s_lshl_b32 s88, s2, 3")
    a("s_add_u32 s88, s88, s3")
    a("s_lshl_b32 s88, s88, 6")
    a("s_add_u32 s88, s88, s43")
    a(f"s_add_u32 s88, s88, {WS_ST}")
    a("s_add_u32 s90, s40, s88")
    a("s_addc_u32 s91, s41, 0")
    a("v_mov_b32 v250, 0")
    for i in range(n):
        a(f"v_mov_b32 v251, s{72+2*i}")
        a(f"global_store_dword v250, v251, s[90:91] offset:{4*i}")

REFN = [0]
def refpt(a, name, wg=0):
    if "ref_" + name not in EXP: return
    REFN[0] += 1
    a(f"s_cmp_lg_u32 s2, {wg}")
    a(f"s_cbranch_scc1 Lref{REFN[0]}")
    a("s_memrealtime s[92:93]")
    a("s_load_dwordx2 s[94:95], s[0:1], 96")
    a("s_waitcnt lgkmcnt(0)")
    a("v_mov_b32 v252, 0x3f0000")
    a("v_mov_b32 v253, s92")
    a("global_store_dword v252, v253, s[94:95]")
    a.label(f"Lref{REFN[0]}")
PADK = """.globl k3_kernel
.p2align 8
.type k3_kernel,@function
k3_kernel:
s_cmp_lg_u32 s2, 0
s_cbranch_scc1 Lk3end
s_load_dwordx2 s[4:5], s[0:1], 96
s_waitcnt lgkmcnt(0)
v_mov_b32 v4, 0x3f0000
global_load_dword v5, v4, s[4:5]
s_waitcnt vmcnt(0)
v_readfirstlane_b32 s6, v5
s_mov_b32 s10, 0
Lspin:
s_memrealtime s[8:9]
s_waitcnt lgkmcnt(0)
s_sub_u32 s8, s8, s6
s_add_u32 s10, s10, 1
s_cmp_ge_u32 s10, 100000
s_cbranch_scc1 Lk3end
s_cmp_lt_u32 s8, 4000
s_cbranch_scc1 Lspin
Lk3end:
s_endpgm
"""
def cmul(a, d, x, w):
    a(f"v_pk_mul_f32 {vr(d,2)}, {vr(x,2)}, {vr(w,2)} op_sel_hi:[1,0]")
    a(f"v_pk_fma_f32 {vr(d,2)}, {vr(x,2)}, {vr(w,2)}, {vr(d,2)} op_sel:[1,1,0] op_sel_hi:[0,1,1] neg_lo:[1,0,0]")

WS_UT = 0x400000
U_OFF, U_STR = 0, 1184
TAB_OFF, TAB_STR, ROW = 18944, 15504, 272
KX_REL, YS_REL, CAR_REL = 4096, 8448, 0
UR = 140
def gen_A(a):
    a.label("LA")
    a.lds_reset(); a.vm_reset()
    a("s_and_b32 s46, s3, 3")
    a("s_lshr_b32 s47, s3, 2")
    a("s_add_u32 s48, s42, s46")
    a("s_lshl_b32 s49, s48, 8")
    a("s_lshl_b32 s50, s47, 7")
    a("s_add_u32 s49, s49, s50")
    a("v_lshlrev_b32 v4, 1, v1")
    a("v_add_u32 v4, s49, v4")
    a("s_lshl_b32 s50, s48, 1")
    a("v_mov_b32 v5, s50")
    a("s_sub_u32 s55, s45, 20")
    a("s_lshl_b32 s55, s55, 3")
    a("s_add_u32 s55, s55, s3")
    a("s_mul_i32 s56, s55, 27")
    a("s_sub_u32 s56, s56, 5")
    a("v_min_u32 v13, 31, v1")
    a("v_add_u32 v13, s56, v13")
    a("v_min_u32 v13, 2559, v13")
    a("v_and_b32 v14, 15, v13")
    a("v_lshrrev_b32 v13, 4, v13")
    a("v_mul_u32_u24 v14, 40960, v14")
    a("v_lshl_add_u32 v13, v13, 7, v14")
    a("s_mul_i32 s55, s55, 5")
    a("v_add_u32 v14, s55, v1")
    a("v_min_u32 v14, 419, v14")
    a("v_lshlrev_b32 v14, 7, v14")
    a(f"v_add_u32 v14, {WS_KV}, v14")
    a("s_and_b32 s55, s44, 3")
    a("s_mul_i32 s55, s55, 655360")
    a("s_lshr_b32 s56, s44, 2")
    a("s_xor_b32 s56, s56, 1")
    a("s_mul_i32 s56, s56, 20480")
    a("s_add_u32 s55, s55, s56")
    a("v_cmp_gt_u32 vcc, 5, v1")
    a("v_add_u32 v13, s55, v13")
    a("v_cndmask_b32 v13, v13, v14, vcc")
    a("s_waitcnt lgkmcnt(0)")
    stamp(a, 1)
    a(f"global_load_ushort v20, v5, s[{P_LDT}:{P_LDT+1}]")
    a(f"global_load_ushort v16, v4, s[{P_LA}:{P_LA+1}]")
    a(f"global_load_ushort v17, v4, s[{P_AI}:{P_AI+1}]")
    a(f"global_load_ushort v18, v4, s[{P_CR}:{P_CR+1}]")
    a(f"global_load_ushort v19, v4, s[{P_CI}:{P_CI+1}]")
    a(f"global_load_ushort v21, v5, s[{P_DSK}:{P_DSK+1}]")
    a("s_cmp_eq_u32 s63, 1")
    a("s_cbranch_scc1 LA_k1a")
    a(f"global_load_dword v254, v13, s[{P_WS}:{P_WS+1}]")
    srd(a, 12, P_WS, 640*4096, WS_UT)
    a("v_lshlrev_b32 v6, 4, v0")
    a("s_lshl_b32 s54, s42, 12")
    a("s_add_u32 s55, s54, 8192")
    a(f"buffer_load_dwordx4 {vr(UR,4)}, v6, s[12:15], s54 offen")
    a(f"buffer_load_dwordx4 {vr(UR+4,4)}, v6, s[12:15], s55 offen")
    a("s_waitcnt vmcnt(3)")
    a("s_branch LA_kgen")
    a.label("LA_k1a")
    srd(a, 4, P_U, 2048*1280)
    a("s_lshl_b32 s50, s47, 6")
    a("v_add_u32 v55, s50, v1")
    a("v_mul_u32_u24 v56, 20480, v55")
    a("s_mul_i32 s64, s46, 1280")
    a("s_lshl_b32 s51, s42, 1")
    a("s_add_u32 s64, s64, s51")
    a("s_and_b32 s65, s45, 3")
    def scat(i):
        a(f"s_xor_b32 s50, s65, {i}")
        a("s_mul_i32 s50, s50, 5120")
        a("s_add_u32 s50, s50, s64")
        a(f"buffer_load_dwordx2 {vr(UR+2*i,2)}, v{56 if i == 0 else 18}, s[4:7], s50 offen")
    a("s_barrier")
    scat(0)
    a("s_waitcnt vmcnt(1)")
    a.label("LA_kgen")
    a("v_lshrrev_b32 v2, 5, v0")
    a(f"v_mul_u32_u24 v2, {U_STR}, v2")
    a("v_and_b32 v3, 31, v0")
    a("v_lshl_add_u32 v2, v3, 2, v2")
    a("v_mov_b32 v3, 0")
    a.lds(f"ds_write_b32 v2, v3 offset:{U_OFF}")
    a(f"s_mul_i32 s52, s3, {TAB_STR}")
    a(f"s_add_u32 s52, s52, {TAB_OFF}")
    a("s_mov_b32 m0, s52")
    a(f"s_mov_b32 s53, {LOG2E}")
    a(f"s_mov_b32 s54, {INV2PI}")
    a("s_mov_b32 s55, 0x43000000")
    a("v_and_b32 v22, 15, v1")
    a("v_lshrrev_b32 v23, 4, v1")
    a(f"v_mul_u32_u24 v54, {ROW}, v22")
    a("v_lshl_add_u32 v54, v23, 4, v54")
    a("v_add_u32 v54, s52, v54")
    stamp(a, 2)
    for r in (16, 17, 18, 19, 20, 21): a(f"v_lshlrev_b32 v{r}, 16, v{r}")
    a("v_mul_f32 v20, s53, v20")
    a("v_mul_f32 v16, s53, v16")
    a("v_exp_f32 v20, v20")
    a("v_exp_f32 v16, v16")
    a("s_nop 0")
    a("v_cvt_pk_bf16_f32 v16, v20, v16")
    a("v_lshlrev_b32 v20, 16, v16")
    a("v_and_b32 v16, 0xffff0000, v16")
    a("v_mul_f32 v16, v16, v20")
    a("v_mul_f32 v17, v17, v20")
    a("v_mul_f32_e64 v16, -v16, s53")
    a("v_mul_f32 v17, s54, v17")
    a("v_add_f32 v20, v20, v20")
    a("v_mul_f32 v34, v18, v20")
    a("v_mul_f32 v35, v19, v20")
    a("v_mul_f32 v18, s55, v16")
    a("v_mul_f32 v19, s55, v17")
    a("v_fract_f32 v17, v17")
    a("v_fract_f32 v19, v19")
    a("v_exp_f32 v16, v16")
    a("v_exp_f32 v18, v18")
    a("v_cos_f32 v24, v17")
    a("v_sin_f32 v25, v17")
    a("v_cos_f32 v32, v19")
    a("v_sin_f32 v33, v19")
    a("v_mul_f32 v24, v24, v16")
    a("v_mul_f32 v25, v25, v16")
    a("v_mul_f32 v32, v32, v18")
    a("v_mul_f32 v33, v33, v18")
    a(".p2align 3")
    W1, W2, W4, W8, W128 = 24, 26, 28, 30, 32
    cmul(a, W2, W1, W1); cmul(a, W4, W2, W2); cmul(a, W8, W4, W4)
    a("v_xor_b32 v31, 0x80000000, v31")
    tmp = [46]
    def put(row, x):
        t = tmp[0]; tmp[0] = 46 + (t - 46 + 1) % 7
        a(f"v_cvt_pk_bf16_f32 v{t}, v{x}, v{x+1}")
        a.lds(f"ds_write_addtid_b32 v{t} offset:{row*ROW}")
    a("v_mov_b32 v53, 0x3f80")
    a.lds(f"ds_write_addtid_b32 v53 offset:{41*ROW}")
    put(42, W8)
    y = W8
    for j in range(2, 16):
        d = 42 + 2*(j & 1)
        cmul(a, d, y, W8); put(41 + j, d); y = d
    g = 34; row = 0
    toks = {}
    def rdtile(t):
        for k in range(4):
            toks[(t, k)] = a.lds(f"ds_read_b128 {vr(64+16*t+4*k,4)}, v54 offset:{16*t*ROW + 64*k}")
    def mmtile(t):
        for k in range(4):
            a.lds_wait(toks[(t, k)])
            c = "0" if k == 0 else vr(128+4*t, 4)
            a(f"v_mfma_f32_16x16x32_bf16 {vr(128+4*t,4)}, {vr(64+16*t+4*k,4)}, {vr(112+4*k,4)}, {c}")
    for k in range(4):
        a.lds(f"ds_read_b128 {vr(112+4*k,4)}, v54 offset:{41*ROW + 64*k}")
    for h in range(17):
        put(row, g); row += 1
        if h < 2: steps, w = 7, W1
        elif h < 4: steps, w = 3, W2
        elif h < 8: steps, w = 1, W4
        else: steps = 0
        x = g
        for s in range(steps):
            d = 38 + 2*(s & 1)
            cmul(a, d, x, w); put(row, d); row += 1; x = d
        if h < 16:
            gn = 36 if g == 34 else 34
            cmul(a, gn, g, W128); g = gn
        if row == 16: rdtile(0)
        if row == 24: mmtile(0); a(".p2align 3")
        if row == 32: rdtile(1)
        if row == 38: mmtile(1); a(".p2align 3")
    assert row == 41
    rdtile(2)
    stamp(a, 3)
    a("v_lshrrev_b32 v2, 1, v23")
    a("v_and_b32 v3, 1, v23")
    a("v_lshlrev_b32 v8, 9, v2")
    a("v_lshl_add_u32 v8, v3, 4, v8")
    a("v_lshl_add_u32 v8, v22, 5, v8")
    a("v_add_u32 v8, s52, v8")
    a("v_sub_u32 v3, 4, v2")
    a("v_lshlrev_b32 v9, v3, v22")
    a("v_lshl_add_u32 v9, v23, 8, v9")
    a("v_add_u32 v9, s52, v9")
    a("v_mul_u32_u24 v3, 120, v2")
    a("v_add3_u32 v10, v9, v3, 8")
    a("v_lshlrev_b32 v11, 8, v23")
    a("v_lshl_add_u32 v11, v22, 2, v11")
    a("v_add_u32 v11, s52, v11")
    a("v_add_u32 v11, 2048, v11")
    a.lds(f"ds_write_b128 v8, {vr(128,4)}")
    a.lds(f"ds_write_b64 v9, {vr(132,2)} offset:1024")
    a.lds(f"ds_write_b64 v10, {vr(134,2)} offset:1024")
    mmtile(2)
    a("s_nop 7")
    a.lds(f"ds_write2_b32 v11, v136, v137 offset0:0 offset1:16")
    a.lds(f"ds_write2_b32 v11, v138, v139 offset0:32 offset1:48")
    a("s_cmp_eq_u32 s63, 1")
    a("s_cbranch_scc1 LA_k1b")
    a("v_bfe_u32 v12, v0, 1, 2")
    a(f"v_mul_u32_u24 v12, {U_STR}, v12")
    a("v_bfe_u32 v13, v0, 3, 5")
    a("v_lshl_add_u32 v12, v13, 5, v12")
    a("v_and_b32 v13, 1, v0")
    a("v_lshl_add_u32 v12, v13, 4, v12")
    a(f"s_mul_i32 s50, s47, {4*U_STR}")
    a("v_add_u32 v12, s50, v12")
    a("s_waitcnt vmcnt(0)")
    a(f"ds_write_b128 v12, {vr(UR,4)} offset:{U_OFF + 128}")
    a(f"ds_write_b128 v12, {vr(UR+4,4)} offset:{U_OFF + 8*U_STR + 128}")
    a.label("LA_k1b")
    a("s_waitcnt lgkmcnt(0)")
    a("s_barrier")
    stamp(a, 4)
    refpt(a, "akgen", 170)
    a.lds_reset()
    def stage_u():
        for i in range(1, 4): scat(i)
        a(f"s_mul_i32 s50, s46, {U_STR}")
        a("s_lshl_b32 s51, s65, 1")
        a("s_and_b32 s51, s51, 4")
        a("s_add_u32 s50, s50, s51")
        a("v_lshlrev_b32 v8, 3, v17")
        a("v_add_u32 v8, s50, v8")
        a("v_xor_b32 v9, 4, v8")
        a("s_bitcmp1_b32 s65, 0")
        a("s_cselect_b32 s56, 0x01000504, s66")
        a("s_cselect_b32 s57, 0x03020706, s67")
        for p in range(2):
            a(f"s_waitcnt vmcnt({2-2*p})")
            for ch in range(4):
                a(f"v_perm_b32 v{10+ch}, v{UR+4*p+2+ch//2}, v{UR+4*p+ch//2}, {'s56' if ch % 2 == 0 else 's57'}")
                a(f"ds_write_b32 v{8+p}, v{10+ch} offset:{U_OFF + 4*U_STR*ch + 128}")
    gen_A.stage_u = stage_u
    a("s_mov_b32 s66, 0x05040100")
    a("s_mov_b32 s67, 0x07060302")
    a("v_mov_b32 v17, v55")
    a("v_mov_b32 v18, v56")
    a("s_cmp_ge_u32 s3, 4")
    a("s_cbranch_scc1 LA_help")
    D2 = 4*TAB_STR
    a("v_lshlrev_b32 v2, 4, v1")
    a("v_add_u32 v2, s52, v2")
    a("v_lshlrev_b32 v3, 3, v1")
    a("v_add_u32 v3, s52, v3")
    t0 = a.lds(f"ds_read_b128 v[8:11], v2")
    t0 = a.lds(f"ds_read_b128 v[12:15], v2 offset:{D2}")
    tr = []
    for R, base in enumerate((256, 384, 512)):
        b = 24 + 8*R
        a.lds(f"ds_read_b64 {vr(b,2)}, v3 offset:{4*base}")
        a.lds(f"ds_read_b32 v{b+2}, v3 offset:{4*base+8}")
        a.lds(f"ds_read_b64 {vr(b+4,2)}, v3 offset:{4*base+D2}")
        tr.append(a.lds(f"ds_read_b32 v{b+6}, v3 offset:{4*base+8+D2}"))
    a("v_cmp_eq_u32 vcc, 0, v1")
    a("v_mov_b32 v4, 0")
    a("v_and_b32 v5, 7, v1")
    a("v_lshlrev_b32 v5, 2, v5")
    a("v_add_u32 v5, s52, v5")
    a("v_cndmask_b32 v21, v4, v21, vcc")
    a.lds(f"ds_write_b32 v5, v4 offset:{KX_REL}")
    a("v_mov_b32 v16, v5")
    a("v_lshlrev_b32 v7, 5, v1")
    a("v_add_u32 v7, s52, v7")
    a.lds_wait(t0)
    for i in range(4): a(f"v_add_f32 v{8+i}, v{8+i}, v{12+i}")
    a("v_add_f32 v8, v8, v21")
    a("v_cvt_pk_bf16_f32 v12, v8, v9")
    a("v_cvt_pk_bf16_f32 v13, v10, v11")
    a.lds(f"ds_write_b64 v3, v[12:13] offset:{KX_REL+32}")
    for R in range(3):
        b = 24 + 8*R
        a.lds_wait(tr[R])
        for i in range(3): a(f"v_add_f32 v{b+i}, v{b+i}, v{b+4+i}")
        A_, B_, C_ = b, b+1, b+2
        pats = [[(A_,A_),(B_,C_)], [(A_,A_),(A_,B_),(B_,B_),(C_,C_)],
                [(A_,A_),(A_,A_),(A_,B_),(B_,B_),(B_,B_),(B_,B_),(C_,C_),(C_,C_)]][R]
        o = [48, 52, 56][R]
        for i, (x, y) in enumerate(pats): a(f"v_cvt_pk_bf16_f32 v{o+i}, v{x}, v{y}")
        if R == 0: a.lds(f"ds_write_b64 v3, v[48:49] offset:{KX_REL+32+512}")
        elif R == 1: a.lds(f"ds_write_b128 v2, v[52:55] offset:{KX_REL+32+1024}")
        else:
            a.lds(f"ds_write_b128 v7, v[56:59] offset:{KX_REL+32+2048}")
            a.lds(f"ds_write_b128 v7, v[60:63] offset:{KX_REL+32+2048+16}")
    a("v_and_b32 v4, 3, v1")
    a("v_bfe_u32 v5, v1, 2, 2")
    a("v_sub_u32 v4, v4, v5")
    a("v_lshlrev_b32 v5, 3, v23")
    a("v_sub_u32 v4, v4, v5")
    a("v_add_u32 v4, 28, v4")
    a("v_lshlrev_b32 v4, 3, v4")
    a("v_add_u32 v4, s52, v4")
    AOP, ACC, BR, NB = 96, 160, 16, 20
    a("s_cmp_eq_u32 s63, 0")
    a("s_cbranch_scc1 LA_c0")
    gen_A.stage_u()
    a("s_waitcnt lgkmcnt(0)")
    a("s_barrier")
    a.label("LA_c0")
    for s in list(range(1, 16, 2)) + list(range(0, 16, 2)):
        a.lds(f"ds_read_b64_tr_b16 {vr(AOP+4*s,2)}, v4 offset:{KX_REL + 256*s + 32}")
        a.lds(f"ds_read_b64_tr_b16 {vr(AOP+4*s+2,2)}, v4 offset:{KX_REL + 256*s}")
    a(f"s_mul_i32 s50, s3, {4*U_STR}")
    a("v_lshlrev_b32 v5, 3, v22")
    a("v_lshl_add_u32 v5, v23, 4, v5")
    a("v_add_u32 v5, s50, v5")
    a("v_add_u32 v6, 16, v1")
    a("v_subrev_u32 v7, 47, v1")
    a("v_cmp_lt_u32 vcc, 47, v1")
    a("v_cndmask_b32 v6, v6, v7, vcc")
    a("v_cmp_eq_u32 vcc, 63, v1")
    acc = lambda par, q, i=0: ACC + 12*q + 6*par + i
    for q in range(8):
        for par in range(2):
            a(f"v_mov_b32 v{acc(par,q,4)}, 0")
            a(f"v_mov_b32 v{acc(par,q,5)}, 0")
    a("v_cndmask_b32 v6, v6, 64, vcc")
    a("v_lshlrev_b32 v6, 4, v6")
    a("v_add_u32 v6, s52, v6")
    a("v_mov_b32 v4, 0")
    a(f"ds_write_b32 v16, v4 offset:{CAR_REL}")
    a("s_waitcnt lgkmcnt(0)")
    stamp(a, 5)
    a.lds_reset()
    seq = [(r, rho) for r in range(-1, 15) for rho in range(4)]
    btok = {}
    breads = []
    for n, (r, rho) in enumerate(seq):
        b = BR + 4*(n % NB)
        off = U_OFF + rho*U_STR + 8 + 64*(r+1)
        breads.append((n, lambda b=b, off=off: a.lds(f"ds_read_b64 {vr(b,2)}, v5 offset:{off}")))
        breads.append((n, lambda b=b, off=off, n=n: btok.__setitem__(n, a.lds(f"ds_read_b64 {vr(b+2,2)}, v5 offset:{off+8}"))))
    for _ in range(6): breads.pop(0)[1]()
    epi = []
    def make_epi(q):
        E = lambda i: f"v{acc(0,q,i)}"
        O = lambda i: f"v{acc(1,q,i)}"
        tk = {}
        T = 8 + 4*(q % 2)
        L = []
        V = lambda t: L.append(("v", lambda: a(t)))
        V(f"v_add_f32 {O(3)}, {O(3)}, {E(4)}")
        V(f"v_add_f32 {O(4)}, {O(4)}, {E(5)}")
        L.append(("l", lambda: a.lds(f"ds_write_b128 v6, {vr(acc(1,q,2),4)} offset:{CAR_REL+1024*q}")))
        L.append(("l", lambda: tk.__setitem__(0, a.lds(f"ds_read_b128 {vr(T,4)}, v2 offset:{CAR_REL+1024*q}"))))
        V(f"v_add_f32 {E(1)}, {E(1)}, {O(0)}")
        V(f"v_add_f32 {E(2)}, {E(2)}, {O(1)}")
        V(f"v_add_f32 {E(3)}, {E(3)}, {O(2)}")
        L += [("d", None)]*8
        def fin():
            a.lds_wait(tk[0]); a(f"v_add_f32 {E(0)}, {E(0)}, v{T+1}")
        L.append(("v", fin))
        V(f"v_add_f32 {E(1)}, {E(1)}, v{T+2}")
        V(f"v_add_f32 {E(2)}, {E(2)}, v{T+3}")
        V(f"v_cvt_pk_bf16_f32 {E(4)}, {E(0)}, {E(1)}")
        V(f"v_cvt_pk_bf16_f32 {E(5)}, {E(2)}, {E(3)}")
        L.append(("l", lambda: tk.__setitem__(1, a.lds(f"ds_write_b64 v3, {vr(acc(0,q,4),2)} offset:{YS_REL + 512*q}"))))
        L += [("d", None)]*6
        def bar():
            a.lds_wait(tk[1]); a("s_barrier")
        L.append(("v", bar))
        return L
    for n, (r, rho) in enumerate(seq):
        b = BR + 4*(n % NB)
        qs = [q for q in range(8) if 0 <= 2*q - r <= 15]
        while n not in btok: breads.pop(0)[1]()
        a.lds_wait(btok[n])
        npad = 0
        for qi, q in enumerate(qs):
            s = 2*q - r
            d = acc(rho & 1, q, 2*(rho >> 1))
            c = "0" if (r == -1 and rho < 2) else vr(d, 4)
            a(f"v_mfma_f32_16x16x32_bf16 {vr(d,4)}, {vr(AOP+4*s,4)}, {vr(b,4)}, {c}")
            l0 = len(a.lines)
            slots, ldsok = 2, True
            ahead = (breads[0][0] - n) if breads else 99
            if breads and breads[0][0] < n + NB - 1 and (ahead < 4 or not (epi and epi[0][0] == "l")):
                breads.pop(0)[1](); slots -= 1; ldsok = False
            while slots > 0 and epi:
                k, f = epi[0]
                if k == "l" and not ldsok: break
                epi.pop(0)
                if k == "d": break
                f(); slots -= 1
                if k == "l": ldsok = False
            npad += 1 + len(a.lines) - l0
        if rho == 3 and r >= 0 and r % 2 == 0:
            epi.extend([("d", None)]*8 + make_epi(r // 2))
    for k, f in epi:
        if f: f()
    stamp(a, 6)
    stamp_flush(a, 0)
    a("s_endpgm")
    a.label("LA_help")
    a("s_cmp_eq_u32 s63, 0")
    a("s_cbranch_scc1 LA_hout")
    gen_A.stage_u()
    a("s_waitcnt lgkmcnt(0)")
    a("s_barrier")
    stamp(a, 5)
    a("s_sub_u32 s47, s45, 24")
    ab = len(a.lines)
    srd(a, 12, P_WO, 640*1280)
    a("s_lshl_b32 s53, s47, 2")
    a("s_add_u32 s53, s53, s46")
    a("s_mul_i32 s53, s53, 25600")
    a("s_lshr_b32 s54, s44, 2")
    a("s_mul_i32 s54, s54, 640")
    a("s_add_u32 s53, s53, s54")
    for i in range(2):
        a(f"v_add_u32 v2, {64*i}, v1")
        a("v_min_u32 v2, 99, v2")
        a("v_mul_u32_u24 v3, 205, v2")
        a("v_lshrrev_b32 v3, 10, v3")
        a("v_mul_u32_u24 v3, 640, v3")
        a("v_lshl_add_u32 v2, v2, 7, v3")
        a(f"buffer_load_dword v{60+i}, v2, s[12:15], s53 offen")
    a("s_cmp_lg_u32 s46, 3")
    a("s_cbranch_scc1 LA_hblk")
    a("s_mul_i32 s53, s44, 48")
    a("s_mul_i32 s54, s47, 6")
    a("s_add_u32 s53, s53, s54")
    a("s_add_u32 s53, s53, 256")
    a("s_lshl_b32 s53, s53, 8")
    a("v_min_u32 v2, 11, v1")
    a("v_lshlrev_b32 v2, 7, v2")
    a("v_add_u32 v2, s53, v2")
    for i, p in enumerate((P_LA, P_AI, P_CR, P_CI)):
        a(f"global_load_dword v{62+i}, v2, s[{p}:{p+1}]")
    a("s_branch LA_hout")
    a.label("LA_hblk")
    a("s_lshl_b32 s50, s47, 3")
    a("s_add_u32 s50, s50, s44")
    a("s_and_b32 s51, s50, 1")
    a("s_lshr_b32 s50, s50, 1")
    a("v_and_b32 v12, 7, v1")
    a("v_lshrrev_b32 v13, 3, v1")
    a("v_and_b32 v6, 1, v13")
    a("v_lshlrev_b32 v6, 5, v6")
    a("v_add_u32 v6, v6, v23")
    a("v_mul_u32_u24 v6, 1280, v6")
    a("v_lshl_add_u32 v6, v12, 4, v6")
    a("s_mul_i32 s53, s51, 3")
    a("s_add_u32 s53, s53, s46")
    a("s_mul_i32 s54, s50, 81920")
    a("s_lshl_b32 s55, s53, 7")
    a("s_add_u32 s54, s54, s55")
    a("s_add_u32 s54, s54, 512")
    for t in range(8):
        a(f"buffer_load_dwordx4 {vr(64+4*t,4)}, v6, s[4:7], s54 offen")
        if t < 7: a("s_add_u32 s54, s54, 5120")
    a("s_add_u32 s54, s52, 4223")
    a("s_and_b32 s54, s54, 0xffffff80")
    a("v_xor_b32 v14, v12, v13")
    a("v_lshlrev_b32 v14, 4, v14")
    a("v_lshl_add_u32 v15, v12, 10, v14")
    a("v_add_u32 v15, s54, v15")
    a("v_lshlrev_b32 v16, 4, v1")
    a("v_add_u32 v16, s54, v16")
    srd(a, 12, P_WS, 640*4096, WS_UT)
    a("v_lshlrev_b32 v17, 12, v13")
    a("v_lshl_add_u32 v17, v12, 4, v17")
    a("s_lshl_b32 s60, s53, 18")
    a("s_lshl_b32 s55, s50, 7")
    a("s_add_u32 s60, s60, s55")
    a(f"s_add_u32 s60, s60, {256*4096}")
    a.label("LA_hout")
    a("v_and_b32 v4, 3, v1")
    a("v_bfe_u32 v5, v1, 2, 2")
    a(f"v_mul_u32_u24 v5, {TAB_STR}, v5")
    a("v_lshl_add_u32 v5, v4, 7, v5")
    a("v_lshl_add_u32 v5, v23, 3, v5")
    a("s_lshl_b32 s50, s46, 5")
    a("v_add_u32 v5, s50, v5")
    srd(a, 8, P_OUT, 2048*2560)
    a("v_mul_u32_u24 v7, 2560, v1")
    a("s_mul_i32 s50, s46, 163840")
    a("s_lshl_b32 s51, s42, 1")
    a("s_add_u32 s50, s50, s51")
    a("s_cmp_lg_u32 s46, 3")
    a("s_cselect_b32 s61, s63, 0")
    def blk():
        a("s_cmp_eq_u32 s61, 0")
        a("s_cbranch_scc1 LA_hnb")
        a("s_waitcnt vmcnt(2)")
        for k in range(4):
            for e in range(8):
                a(f"v_perm_b32 v{96+4*e+k}, v{64+8*k+4+e//2}, v{64+8*k+e//2}, {'s66' if e % 2 == 0 else 's67'}")
        for e in range(8):
            a(f"ds_write_b128 v15, {vr(96+4*e,4)} offset:{128*e}")
        for i in range(8):
            a(f"v_xor_b32 v18, {16*i}, v16")
            a(f"ds_read_b128 {vr(64+4*i,4)}, v18 offset:{1024*i}")
        for i in range(8):
            a(f"s_waitcnt lgkmcnt({7-i})")
            a(f"buffer_store_dwordx4 {vr(64+4*i,4)}, v17, s[12:15], s60 offen{SF('ut')}")
            if i < 7: a("s_add_u32 s60, s60, 32768")
        a.label("LA_hnb")
    for q in range(8):
        a("s_barrier")
        a(f"ds_read_b64_tr_b16 {vr(24+2*q,2)}, v5 offset:{TAB_OFF + YS_REL + 512*q}")
        a("s_waitcnt lgkmcnt(0)")
        a(f"buffer_store_dwordx2 {vr(24+2*q,2)}, v7, s[8:11], s50 offen{SF('ya')}")
        if q < 7: a("s_add_u32 s50, s50, 655360")
        if q == 1: blk()
    stamp(a, 6)
    stamp_flush(a, 0)
    a("s_endpgm")

CH_W = 20480
CH_BYTES = 36864
NBUF = 4
def phi2(a, x, t):
    a(f"v_pk_mul_f32 {vr(t,2)}, {vr(x,2)}, s[60:61]")
    a(f"v_max_f32_e64 v{x}, s62, v{x}")
    a(f"v_exp_f32 v{t}, v{t} clamp")
    a(f"v_exp_f32 v{t+1}, v{t+1} clamp")
    a(f"v_max_f32_e64 v{x+1}, s62, v{x+1}")
    a(f"v_pk_add_f32 {vr(x,2)}, {vr(x,2)}, {vr(t,2)}")

RED_OFF = 2*CH_BYTES
def gen_G1(a):
    a.label("LG1")
    a("s_and_b32 s46, s44, 3")
    a("s_lshl_b32 s46, s46, 2")
    a("s_and_b32 s47, s45, 3")
    a("s_add_u32 s46, s46, s47")
    a("s_lshr_b32 s47, s45, 2")
    a("s_lshr_b32 s48, s44, 2")
    a("s_cmp_ge_u32 s47, 4")
    a("s_cselect_b32 s63, 1, 0")
    a("s_cbranch_scc1 LG1_q0")
    a("s_lshl_b32 s49, s48, 2")
    a("s_add_u32 s49, s49, s47")
    a("s_mul_i32 s50, s49, 160")
    a("s_add_u32 s50, s50, 1280")
    a("s_mov_b32 s51, 1120")
    a("s_branch LG1_c")
    a.label("LG1_q0")
    a("s_lshl_b32 s49, s48, 1")
    a("s_add_u32 s49, s49, s47")
    a("s_sub_u32 s49, s49, 4")
    a("s_mul_i32 s50, s49, 320")
    a("s_mov_b32 s51, 0")
    a.label("LG1_c")
    a("s_cmp_ge_u32 s3, 4")
    a("s_cbranch_scc1 LG1_load")
    a("v_and_b32 v2, 15, v1")
    a("v_lshrrev_b32 v3, 4, v1")
    a("s_lshl_b32 s52, s46, 2")
    a("s_add_u32 s52, s52, s3")
    a("s_mul_i32 s53, s52, 40960")
    ACC, AR, BR, NBR, PD = 16, 96, 112, 10, 6
    a("v_bfe_u32 v5, v1, 2, 2")
    a("v_lshl_add_u32 v5, v3, 3, v5")
    a("v_mul_u32_u24 v5, 320, v5")
    a("v_and_b32 v6, 3, v1")
    a("v_lshl_add_u32 v5, v6, 3, v5")
    a("v_and_b32 v6, 1, v3")
    a("v_lshlrev_b32 v6, 5, v6")
    a("v_add_u32 v4, v5, v6")
    a("v_sub_u32 v5, v5, v6")
    a("v_add_u32 v5, 32, v5")
    a("v_lshrrev_b32 v6, 1, v2")
    a("v_xor_b32 v6, v6, v3")
    a("v_lshlrev_b32 v6, 4, v6")
    a("v_lshl_add_u32 v6, v2, 7, v6")
    a("s_lshl_b32 s54, s3, 12")
    a(f"s_add_u32 s54, s54, {CH_W}")
    a("v_add_u32 v6, s54, v6")
    a("v_xor_b32 v7, 64, v6")
    for i in range(4): a(f"v_mov_b32 v{8+i}, v{4+i}")
    for i in range(80): a(f"v_mov_b32 v{ACC+i}, 0")
    a(f"s_mov_b32 s60, {LOG2E}")
    a(f"s_mov_b32 s61, {LOG2E}")
    a(f"s_mov_b32 s62, {EPS}")
    a("s_mov_b32 s55, 0")
    a("s_mov_b32 s56, 0")
    a("s_waitcnt lgkmcnt(0)")
    stamp(a, 1)
    def rdB(n, h):
        ks, T = divmod(n, 10)
        off = ks*32*320 + (T & ~1)*32
        b = BR + 4*(n % NBR)
        a(f"ds_read_b64_tr_b16 {vr(b+2*h,2)}, v{8+(T&1)} offset:{off+1280*h}")
    def rdA(ks, rt):
        a(f"ds_read_b128 {vr(AR+8*ks+4*rt,4)}, v{10+ks} offset:{2048*rt}")
    a("s_barrier")
    refpt(a, "b0", 9)
    rdB(0, 0); rdA(0, 0); rdB(0, 1); rdA(0, 1)
    for n in range(1, PD): rdB(n, 0); rdB(n, 1)
    stamp(a, 2)
    a("s_cmp_eq_u32 s63, 1")
    a("s_cbranch_scc1 LG1_qloop")
    for variant in ("kv", "q"):
        a(".p2align 3")
        a.label(f"LG1_{variant}loop")
        for n in range(20):
            ks, T = divmod(n, 10)
            cnt = 2*(PD-1)
            if (n % 10) > 10 - PD: cnt += 2
            a(f"s_waitcnt lgkmcnt({cnt})")
            if 'nopal' in EXP: a("s_nop 0")
            b = BR + 4*(n % NBR)
            for rt in range(2):
                ac = ACC + 8*T + 4*rt
                ab = AR + 8*ks + 4*rt
                if variant == "kv":
                    a(f"v_mfma_f32_16x16x32_bf16 {vr(ac,4)}, {vr(ab,4)}, {vr(b,4)}, {vr(ac,4)}")
                else:
                    a(f"v_mfma_f32_16x16x32_bf16 {vr(ac,4)}, {vr(b,4)}, {vr(ab,4)}, {vr(ac,4)}")
                m = (n + PD) % 20
                if rt == 0 and n == 20 - PD:
                    a(f"s_add_u32 s56, s56, {CH_BYTES}")
                    a(f"s_cmp_eq_u32 s56, {NBUF*CH_BYTES}")
                    a("s_cselect_b32 s56, 0, s56")
                    a("s_add_u32 s55, s55, 1")
                    for i in range(4): a(f"v_add_u32 v{8+i}, s56, v{4+i}")
                    a("s_barrier")
                rdB(m, rt)
                if n % 10 == 10 - PD: rdA(1 - ks, rt)
        a("s_cmp_lt_u32 s55, 10")
        a(f"s_cbranch_scc1 LG1_{variant}loop")
        a("s_waitcnt lgkmcnt(0)")
        stamp(a, 4)
        if variant == "kv": refpt(a, "g1end", 9)
        if variant == "kv":
            for T in range(5):
                for rt in range(2):
                    ac = ACC + 8*T + 4*rt
                    phi2(a, ac, 176); phi2(a, ac+2, 178)
                    a(f"v_cvt_pk_bf16_f32 v{96+4*T+2*rt}, v{ac}, v{ac+1}")
                    a(f"v_cvt_pk_bf16_f32 v{96+4*T+2*rt+1}, v{ac+2}, v{ac+3}")
            for T in range(5, 10):
                for rt in range(2):
                    ac = ACC + 8*T + 4*rt
                    a(f"v_cvt_pk_bf16_f32 v{96+4*T+2*rt}, v{ac}, v{ac+1}")
                    a(f"v_cvt_pk_bf16_f32 v{96+4*T+2*rt+1}, v{ac+2}, v{ac+3}")
            for i in range(4): a(f"v_mov_b32 v{136+i}, 0x3f803f80")
            a("v_mul_u32_u24 v5, 80, v2")
            a("v_lshl_add_u32 v5, v3, 4, v5")
            a("s_mul_i32 s52, s3, 6720")
            a(f"s_add_u32 s52, s52, {RED_OFF}")
            a("v_add_u32 v5, s52, v5")
            pairs = [(bt, at) for bt in range(5) for at in range(5) if abs(bt - at) <= 1]
            for i, (bt, at) in enumerate(pairs):
                a(f"v_mfma_f32_16x16x32_bf16 {vr(140+4*i,4)}, {vr(96+4*bt,4)}, {vr(116+4*at,4)}, 0")
            for bt in range(5):
                a(f"v_mfma_f32_16x16x32_bf16 {vr(192+4*bt,4)}, {vr(96+4*bt,4)}, v[136:139], 0")
            for i, (bt, at) in enumerate(pairs):
                m = 0
                for l in range(64):
                    e = 16*at + (l & 15); d = 16*bt + 4*(l >> 4)
                    if e // 20 == d // 20: m |= 1 << l
                a(f"s_mov_b32 exec_lo, {m & 0xffffffff:#x}")
                a(f"s_mov_b32 exec_hi, {m >> 32:#x}")
                a(f"ds_write_b128 v5, {vr(140+4*i,4)} offset:{4*(320*at + 16*bt)}")
            for bt in range(5):
                byx = {}
                for g in range(4):
                    h = (16*bt + 4*g) // 20
                    x, j = divmod(20*h + 20, 16)
                    byx.setdefault(x, 0)
                    byx[x] |= 1 << (16*g + j)
                for x, m in byx.items():
                    a(f"s_mov_b32 exec_lo, {m & 0xffffffff:#x}")
                    a(f"s_mov_b32 exec_hi, {m >> 32:#x}")
                    a(f"ds_write_b128 v5, {vr(192+4*bt,4)} offset:{4*(320*x + 16*bt)}")
            a("s_mov_b64 exec, -1")
            a("s_branch LG1_red")
        else:
            srd(a, 8, P_WS, 64*40*1024, WS_PQ)
            a("v_lshrrev_b32 v5, 1, v3")
            a("v_lshlrev_b32 v5, 9, v5")
            a("v_lshl_add_u32 v5, v2, 4, v5")
            a("v_and_b32 v6, 1, v3")
            a("v_lshl_add_u32 v5, v6, 3, v5")
            a("s_mul_i32 s55, s49, 10240")
            a("s_add_u32 s55, s55, s53")
            for T in range(10):
                for rt in range(2):
                    ac = ACC + 8*T + 4*rt
                    phi2(a, ac, 176); phi2(a, ac+2, 178)
                    a(f"v_cvt_pk_bf16_f32 v{ac}, v{ac}, v{ac+1}")
                    a(f"v_cvt_pk_bf16_f32 v{ac+1}, v{ac+2}, v{ac+3}")
                    a(f"buffer_store_dwordx2 {vr(ac,2)}, v5, s[8:11], s55 offen offset:{(T % 4)*1024 + rt*256}{SF('pq')}")
                if T % 4 == 3: a("s_add_u32 s55, s55, 4096")
            stamp(a, 5)
            stamp_flush(a, 0)
            a("s_endpgm")
    a.label("LG1_load")
    a("s_sub_u32 s52, s3, 4")
    a("s_and_b32 s53, s45, 3")
    a("s_mul_i32 s53, s53, 5")
    a("s_lshr_b32 s53, s53, 1")
    a("s_mul_i32 s54, s47, 5")
    a("s_add_u32 s54, s54, 1")
    a("s_mul_i32 s54, s54, 43")
    a("s_lshr_b32 s54, s54, 7")
    a("s_add_u32 s53, s53, s54")
    a("s_add_u32 s53, s53, s44")
    a("s_mul_i32 s54, s53, 26")
    a("s_lshr_b32 s54, s54, 8")
    a("s_mul_i32 s54, s54, 10")
    a("s_sub_u32 s64, s53, s54")
    if 'norot' in EXP: a("s_mov_b32 s64, 0")
    a("v_lshrrev_b32 v2, 3, v1")
    a("v_lshrrev_b32 v3, 1, v2")
    a("v_and_b32 v4, 7, v1")
    a("v_xor_b32 v3, v3, v4")
    a("v_mul_u32_u24 v2, 1280, v2")
    a("v_lshl_add_u32 v13, v3, 4, v2")
    a("v_xor_b32 v14, 64, v13")
    a("v_add_u32 v14, 10240, v14")
    a("s_mul_i32 s65, s46, 163840")
    a("s_mul_i32 s54, s52, 40960")
    a("s_add_u32 s65, s65, s54")
    a("s_mul_i32 s53, s52, 320")
    a("v_add_u32 v2, s53, v1")
    a("s_mov_b32 s56, 0")
    for i in range(5):
        a(f"v_add_u32 v3, {64*i}, v2")
        a("v_mul_u32_u24 v4, 3277, v3")
        a("v_lshrrev_b32 v4, 16, v4")
        a("v_mul_u32_u24 v5, 20, v4")
        a("v_sub_u32 v5, v3, v5")
        a("v_lshrrev_b32 v6, 2, v4")
        a("v_and_b32 v6, 2, v6")
        a("v_xor_b32 v5, v5, v6")
        a("v_cmp_le_u32 vcc, 10, v5")
        a("v_mul_u32_u24 v4, 3840, v4")
        a("v_lshl_add_u32 v4, v5, 4, v4")
        a("v_mov_b32 v6, s51")
        a("v_cndmask_b32 v6, 0, v6, vcc")
        a(f"v_add_u32 v{8+i}, v4, v6")
    a("s_mul_i32 s54, s52, 5120")
    a("s_lshl_b32 s53, s52, 12")
    a(f"s_add_u32 s53, s53, {CH_W}")
    a("s_lshl_b32 s57, s49, 2")
    a("v_mov_b32 v16, 1")
    a("v_mov_b32 v17, 0")
    a("s_add_u32 s58, s63, s52")
    a("s_waitcnt lgkmcnt(0)")
    srd(a, 4, P_W, 640*3840)
    srd(a, 68, P_X, 2048*1280)
    srd(a, 12, P_DBG, 256)
    a("s_mul_i32 s55, s49, 6720")
    a(f"s_add_u32 s55, s55, {WS_KV}")
    srd(a, 8, P_WS, 6720, "s55")
    def dma(ch):
        buf = ch % NBUF
        a(f"s_mul_i32 s59, s64, {64*3840}")
        a("s_add_u32 s59, s59, s50")
        a("s_lshl_b32 s66, s64, 7")
        a("s_add_u32 s66, s66, s65")
        a("s_add_u32 s67, s66, 20480")
        for i in range(4):
            a(f"s_add_u32 m0, s53, {buf*CH_BYTES + 1024*i}")
            a("s_nop 0")
            a(f"buffer_load_dwordx4 v{13+(i&1)}, s[68:71], {'s66' if i < 2 else 's67'} offen lds")
        for i in range(5):
            a(f"s_add_u32 m0, s54, {buf*CH_BYTES + 1024*i}")
            a("s_nop 0")
            a(f"buffer_load_dwordx4 v{8+i}, s[4:7], s59 offen lds")
        a("s_add_u32 s64, s64, 1")
        a("s_cmp_eq_u32 s64, 10")
        a("s_cselect_b32 s64, 0, s64")
    stamp(a, 1)
    dma(0)
    a("s_cmp_lg_u32 s58, 0")
    a("s_cbranch_scc1 LG1_l0")
    a("s_mov_b64 exec, 1")
    a("buffer_atomic_add v16, v17, s[12:15], s57 offen sc0")
    a("s_mov_b64 exec, -1")
    a.label("LG1_l0")
    dma(1)
    stamp(a, 2)
    for ch in range(11):
        if ch < 10: a(f"s_waitcnt vmcnt({9 if ch < 9 else 0})")
        if ch == 0: stamp(a, 3)
        if ch == 6: stamp(a, 4)
        a("s_barrier")
        if ch == 0:
            a("s_cmp_lg_u32 s58, 0")
            a("s_cbranch_scc1 LG1_l1")
            a("v_readfirstlane_b32 s56, v16")
            a("s_nop 0")
            a("s_cmp_eq_u32 s56, 0")
            a("s_cselect_b32 s56, 1, 0")
            a("s_cbranch_scc0 LG1_l1")
            a("v_lshlrev_b32 v18, 4, v1")
            for i in range(4): a(f"v_mov_b32 v{20+i}, 0")
            a("s_mov_b32 s66, 4096")
            for i in range(7):
                so = "0" if i < 4 else "s66"
                a(f"buffer_store_dwordx4 v[20:23], v18, s[8:11], {so} offen offset:{1024*(i%4)} sc0 sc1")
            a.label("LG1_l1")
        if ch == 2:
            a("s_cmp_eq_u32 s56, 0")
            a("s_cbranch_scc1 LG1_l2")
            a("v_mov_b32 v16, 1")
            a("s_mov_b64 exec, 1")
            a("buffer_atomic_add v16, v17, s[12:15], s57 offen offset:128")
            a("s_mov_b64 exec, -1")
            a.label("LG1_l2")
        if ch + 2 < 10 and 'nodma' not in EXP: dma(ch + 2)
    a("s_cmp_eq_u32 s63, 1")
    a("s_cbranch_scc1 Lend")
    a("s_cmp_lg_u32 s58, 0")
    a("s_cbranch_scc1 LG1_red2")
    a("s_mov_b32 s67, 0")
    a("s_mov_b64 exec, 1")
    a.label("LG1_poll")
    a("s_add_u32 s67, s67, 1")
    a("s_cmp_ge_u32 s67, 0x40000")
    a("s_cbranch_scc1 LG1_red2")
    a("buffer_load_dword v16, v17, s[12:15], s57 offen offset:128 sc0 sc1")
    a("s_waitcnt vmcnt(0)")
    a("v_readfirstlane_b32 s56, v16")
    a("s_nop 0")
    a("s_cmp_eq_u32 s56, 0")
    a("s_cbranch_scc0 LG1_red2")
    a("s_sleep 2")
    a("s_branch LG1_poll")
    a.label("LG1_red")
    a("s_mul_i32 s55, s49, 6720")
    a(f"s_add_u32 s55, s55, {WS_KV}")
    srd(a, 8, P_WS, 6720, "s55")
    a.label("LG1_red2")
    a("s_mov_b64 exec, -1")
    a("v_lshlrev_b32 v2, 2, v0")
    a(f"v_add_u32 v3, {RED_OFF}, v2")
    a("s_waitcnt lgkmcnt(0)")
    stamp(a, 5)
    a("s_barrier")
    stamp(a, 6)
    for n in range(4):
        for w in range(4):
            a(f"ds_read_b32 v{8+4*n+w}, v3 offset:{6720*w + 2048*n}")
    a("s_mov_b32 s66, 4096")
    for n in range(4):
        a(f"s_waitcnt lgkmcnt({12-4*n})")
        a(f"v_add_f32 v{8+4*n}, v{8+4*n}, v{9+4*n}")
        a(f"v_add_f32 v{10+4*n}, v{10+4*n}, v{11+4*n}")
        a(f"v_add_f32 v{8+4*n}, v{8+4*n}, v{10+4*n}")
        so = "0" if n < 2 else "s66"
        a(f"buffer_atomic_add_f32 v{8+4*n}, v2, s[8:11], {so} offen offset:{2048*(n%2)}")
    stamp_flush(a, 0)
    a("s_endpgm")

KVI = 81920 + 64
HST = 1744
def gen_G2(a):
    a.label("LG2")
    a.vm_reset(); a.lds_reset()
    a("v_lshlrev_b32 v2, 4, v1")
    a("s_and_b32 s46, s44, 3")
    a("s_lshl_b32 s46, s46, 2")
    a("s_and_b32 s47, s45, 3")
    a("s_add_u32 s46, s46, s47")
    a("s_lshr_b32 s47, s44, 2")
    a("s_mul_i32 s47, s47, 5")
    a("s_lshr_b32 s48, s45, 2")
    a("s_add_u32 s47, s47, s48")
    a("s_and_b32 s48, s3, 3")
    a("s_lshr_b32 s49, s3, 2")
    a("v_lshrrev_b32 v3, 4, v1")
    a("v_bfe_u32 v4, v1, 2, 2")
    a("v_xor_b32 v5, v4, v3")
    a("v_lshrrev_b32 v6, 1, v5")
    a("v_lshl_add_u32 v6, v3, 1, v6")
    a("v_mul_u32_u24 v6, 1280, v6")
    a("v_and_b32 v5, 1, v5")
    a("v_lshl_add_u32 v6, v5, 6, v6")
    a("v_and_b32 v5, 3, v1")
    a("v_lshl_add_u32 v8, v5, 4, v6")
    a("s_mul_i32 s56, s48, 40")
    a("s_mul_i32 s57, s49, 320")
    a("s_add_u32 s56, s56, s57")
    a("s_lshl_b32 s57, s56, 7")
    a("s_mul_i32 s55, s56, 1280")
    a("s_lshl_b32 s56, s47, 7")
    a("s_add_u32 s55, s55, s56")
    a("s_mul_i32 s50, s3, 6720")
    a(f"s_add_u32 s51, s50, {WS_KV}")
    a("s_mov_b32 s66, 3360")
    a("s_waitcnt lgkmcnt(0)")
    stamp(a, 1)
    srd(a, 12, P_WO, 640*1280)
    wt = {}
    def dmaw(stage, i):
        a(f"s_add_u32 m0, s57, {1024*i + 20480*stage}")
        a(f"s_add_u32 s56, s55, {10240*i + 204800*stage}")
        return a.vm(f"buffer_load_dwordx4 v8, s[12:15], s56 offen lds")
    NPRE = 10 if 'g2pre10' in EXP else 5 if 'g2pre5' in EXP else 0
    for i in range(NPRE): wt[i // 5] = dmaw(i // 5, i % 5)
    a(f"s_mul_i32 s50, s3, {4*HST}")
    a(f"s_add_u32 s50, s50, {KVI-40}")
    for hf in range(2):
        a(f"v_add_u32 v7, {64*hf}, v1")
        a("v_mul_u32_u24 v6, 205, v7")
        a("v_lshrrev_b32 v6, 10, v6")
        a("v_mul_u32_u24 v6, 40, v6")
        a("v_lshl_add_u32 v7, v7, 3, v6")
        a(f"v_add_u32 v{9+hf}, s50, v7")
    srd(a, 8, P_WS, 6720, "s51")
    KVR = 16
    kt = [None]*8
    for i in (0, 2, 4, 6, 1, 3, 5, 7):
        h4, hf = divmod(i, 2)
        so = "0" if h4 < 2 else "s66"
        if i == 1: a("s_mov_b32 exec_hi, 0x1ff")
        kt[i] = a.vm(f"buffer_load_dwordx4 {vr(KVR+4*i,4)}, v2, s[8:11], {so} offen offset:{1680*(h4%2) + 1024*hf}")
    a("s_mov_b32 exec_hi, -1")
    srd(a, 4, P_WS, 64*40*1024, WS_PQ)
    a("s_lshl_b32 s52, s46, 2")
    a("s_add_u32 s52, s52, s48")
    a("s_mul_i32 s53, s52, 40960")
    a("s_mul_i32 s54, s49, 20480")
    a("s_add_u32 s53, s53, s54")
    PQ = 96
    ptok = []
    def loadpq(c):
        ptok.append(a.vm(f"buffer_load_dwordx4 {vr(PQ+4*c,4)}, v2, s[4:7], s53 offen offset:{1024*(c%4)}"))
        if c % 4 == 3: a("s_add_u32 s53, s53, 4096")
    a("v_mov_b32 v48, 0")
    a("v_mov_b32 v49, 0")
    for h4 in range(4): a.lds(f"ds_write_b64 v9, v[48:49] offset:{(HST+8)*h4}")
    a("s_mov_b32 exec_hi, 0x3fff")
    for h4 in range(4): a.lds(f"ds_write_b64 v10, v[48:49] offset:{(HST+8)*h4}")
    a("s_mov_b32 exec_hi, -1")
    a("v_bfe_u32 v6, v1, 3, 2")
    a("v_lshl_add_u32 v6, v6, 2, v5")
    a("v_bfe_u32 v7, v1, 2, 1")
    a("v_lshl_add_u32 v7, v6, 1, v7")
    a("v_min_u32 v7, 20, v7")
    a("v_mul_u32_u24 v7, 80, v7")
    a("v_lshrrev_b32 v6, 5, v1")
    a("v_lshl_add_u32 v7, v6, 4, v7")
    a(f"s_mul_i32 s58, s49, {16*HST}")
    a(f"s_add_u32 s58, s58, {KVI}")
    a("v_add_u32 v13, s58, v7")
    a("v_lshlrev_b32 v6, 1, v6")
    a("v_or_b32 v6, s49, v6")
    a("v_xor_b32 v6, v6, v4")
    a("v_lshlrev_b32 v6, 6, v6")
    a("v_lshl_add_u32 v6, v4, 8, v6")
    a("v_and_b32 v7, 1, v1")
    a("v_lshl_add_u32 v6, v7, 5, v6")
    a("v_and_b32 v7, 16, v1")
    a("v_add_u32 v6, v6, v7")
    a("v_and_b32 v7, 2, v1")
    a("v_lshl_add_u32 v6, v7, 2, v6")
    a("s_mul_i32 s58, s49, 40960")
    a("v_add_u32 v15, s58, v6")
    a("v_xor_b32 v14, 64, v15")
    a(f"s_mov_b32 s62, {EPS}")
    for c in range(3): loadpq(c)
    stamp(a, 2)
    for i in (0, 2, 4, 6, 1, 3, 5, 7):
        a.vm_wait(kt[i])
        b = KVR + 4*i
        a(f"v_cvt_pk_bf16_f32 v{b}, v{b}, v{b+1}")
        a(f"v_cvt_pk_bf16_f32 v{b+1}, v{b+2}, v{b+3}")
        if i == 1: a("s_mov_b32 exec_hi, 0x1ff")
        a.lds(f"ds_write_b64 v{9+i%2}, {vr(b,2)} offset:{(HST+8)*(i//2)+40}")
    a("s_mov_b32 exec_hi, -1")
    for c in range(3, 7): loadpq(c)
    stamp(a, 3)
    a("s_waitcnt lgkmcnt(0)")
    a("s_barrier")
    stamp(a, 4)
    refpt(a, "g2b", 9)
    a.lds_reset()
    DD, ND = 16, 3
    OO = 64
    RC = 11
    ACC = 176
    KF = 208
    WF = 224
    ktok = {}; wtok = {}
    def issueK(n):
        hl, cc = divmod(n, 2)
        ktok[n] = a.lds(f"ds_read_b128 {vr(KF+4*(n%4),4)}, v13 offset:{hl*HST + cc*32}")
    def issueW(n, h):
        st, tau = divmod(n, 2)
        b = WF + 4*(n % 8)
        wtok[n] = a.lds(f"ds_read_b64_tr_b16 {vr(b+2*h,2)}, v{14+tau} offset:{st*2048+1024*h}")
    def om(n):
        hl, cc = divmod(n, 2)
        d = DD + 16*(hl % ND)
        c0 = (5*hl) >> 2
        a.vm_wait(ptok[c0+cc])
        a.lds_wait(ktok[n])
        c = "0" if cc == 0 else vr(d, 16)
        a(f"v_mfma_f32_32x32x16_bf16 {vr(d,16)}, {vr(KF+4*(n%4),4)}, {vr(PQ+4*(c0+cc),4)}, {c}")
    def ovalu(hl):
        d = DD + 16*(hl % ND)
        rc = RC + (hl % 2)
        pre = lambda h: [f"v_add_f32 v{RC+h%2}, s62, v{DD+16*(h%ND)+10}", f"v_rcp_f32 v{RC+h%2}, v{RC+h%2}"]
        L = pre(0) if hl == 0 else []
        for i in range(5):
            if i == 4 and hl < 15: L += pre(hl + 1)
            L.append(f"v_mul_f32 v{d+2*i}, v{d+2*i}, v{rc}")
            L.append(f"v_mul_f32 v{d+2*i+1}, v{d+2*i+1}, v{rc}")
            L.append(f"v_cvt_pk_bf16_f32 v{OO + (5*hl+i) % 32}, v{d+2*i}, v{d+2*i+1}")
        return L
    def gm(n):
        st, tau = divmod(n, 2)
        a.lds_wait(wtok[n])
        c = "0" if st == 0 else vr(ACC+16*tau, 16)
        a(f"v_mfma_f32_32x32x16_bf16 {vr(ACC+16*tau,16)}, {vr(WF+4*(n%8),4)}, {vr(OO+4*(st%8),4)}, {c}")
    later = [("w", 0, i) for i in range(5) if NPRE < 5] + [("p", c, 0) for c in range(7, 12)] + [("w", 1, i) for i in range(5) if NPRE < 10] + [("p", c, 0) for c in range(12, 20)]
    def more():
        if later:
            kind, x, y = later.pop(0)
            if 'g2nold' in EXP:
                if kind == "p": ptok.append(0)
                else: wt[x] = 0
            elif kind == "p": loadpq(x)
            else: wt[x] = dmaw(x, y)
    for n in range(4): issueK(n)
    for _ in range(2): more()
    G0 = 6 if NPRE == 0 else 3
    gn = 0; wq = [(n, h) for n in range(40) for h in range(2)]
    gorder = list(range(34)) + [34, 35, 36, 38, 37, 39] if False else list(range(33)) + [34, 33, 36, 38, 35, 37, 39]
    wq = [(n, h) for n in gorder for h in range(2)]
    wdone = 0; cons = set(range(-8, 0))
    XB = KVI - 64
    TB = 10 if NPRE == 0 else 8
    for t in range(19):
        if t == G0 - 1 and NPRE < 5:
            a.vm_wait(wt[0]); a("s_barrier")
        if t == TB and NPRE < 10:
            a.vm_wait(wt[1]); a("s_barrier")
        if t == 17:
            a("s_barrier")
        M = []
        if t < 16: M += [("o", 2*t), ("o", 2*t+1)]
        avail = ((5*(t-2)) // 4) if t >= G0 else 0
        k = 0
        while gn < 40 and gorder[gn] // 2 < avail and (k < 3 or t >= 16):
            M.append(("g", gorder[gn])); gn += 1; k += 1
        if len(M) >= 4 and t < 16: M = [M[0], M[2], M[1]] + M[3:]
        F = list(ovalu(t-2)) if 2 <= t < 18 and 'g2novalu' not in EXP else []
        per = -(-len(F) // max(1, len(M)))
        for j, (kind, n) in enumerate(M):
            if kind == "o":
                om(n)
                if n + 4 < 32 and False: pass
            else:
                assert n < 20 or t >= TB
                while n not in wtok or (wq and wq[0][0] == n): issueW(*wq.pop(0))
                gm(n); wdone += 1
            if kind == "o" and n >= 1 and n + 3 < 32: issueK(n + 3)
            if t >= G0 - 1:
                for _ in range(2):
                    if wq and gorder.index(wq[0][0]) < wdone + 6 and (wq[0][0] - 8) in cons and (wq[0][0] < 20 or t >= TB): issueW(*wq.pop(0))
            if kind == "g": cons.add(n)
            for l in F[j*per:(j+1)*per]: a(l)
            more()
            if t == 18 and n == 39:
                for i in range(4): a.lds(f"ds_write_b128 v3, {vr(ACC+4*i,4)} offset:{1024*i}")
        if t == 12:
            a("s_lshl_b32 s50, s3, 12")
            a(f"s_add_u32 s50, s50, {XB}")
            a("v_add_u32 v3, s50, v2")
            a("s_xor_b32 s51, s3, 4")
            a("s_lshl_b32 s51, s51, 12")
            a(f"s_add_u32 s51, s51, {XB}")
            a("v_add_u32 v4, s51, v2")
            srd(a, 8, P_OUT, 2048*2560)
            a("v_and_b32 v5, 31, v1")
            a("v_mul_u32_u24 v5, 2560, v5")
            a("v_lshrrev_b32 v6, 5, v1")
            a("v_lshl_add_u32 v5, v6, 5, v5")
            a("s_mul_i32 s59, s52, 81920")
            a("s_lshl_b32 s54, s47, 7")
            a("s_add_u32 s59, s59, s54")
            a("s_lshl_b32 s54, s49, 6")
            a("s_add_u32 s59, s59, s54")
            a("s_add_u32 s59, s59, 1280")
    assert gn == 40 and not later and not wq
    stamp(a, 5)
    a("s_waitcnt lgkmcnt(0)")
    a("s_barrier")
    for i in range(4): a(f"ds_read_b128 {vr(32+4*i,4)}, v4 offset:{1024*i}")
    K = ACC + 16
    for i in range(4):
        a(f"s_waitcnt lgkmcnt({3-i})")
        a(f"v_pk_add_f32 {vr(K+4*i,2)}, {vr(K+4*i,2)}, {vr(32+4*i,2)}")
        a(f"v_pk_add_f32 {vr(K+2+4*i,2)}, {vr(K+2+4*i,2)}, {vr(34+4*i,2)}")
        a(f"v_cvt_pk_bf16_f32 v{48+2*i}, v{K+4*i}, v{K+1+4*i}")
        a(f"v_cvt_pk_bf16_f32 v{49+2*i}, v{K+2+4*i}, v{K+3+4*i}")
        if i % 2 == 1:
            a(f"buffer_store_dwordx4 {vr(48+4*(i//2),4)}, v5, s[8:11], s59 offen offset:{16*(i//2)}{SF('ob')}")
    stamp_flush(a, 0)
    a("s_endpgm")

def kd(name):
    return f""".p2align 6
.amdhsa_kernel {name}
  .amdhsa_next_free_vgpr 256
  .amdhsa_next_free_sgpr 96
  .amdhsa_accum_offset 256
  .amdhsa_group_segment_fixed_size 0
  .amdhsa_kernarg_size 104
  .amdhsa_user_sgpr_count 2
  .amdhsa_user_sgpr_kernarg_segment_ptr 1
  .amdhsa_system_sgpr_workgroup_id_x 1
.end_amdhsa_kernel
"""

def main(out):
    hdr = open(f"cdna_kernels/{NAME}.s.ref").read().split("; Override launch")[0]
    a = Asm()
    a(".text")
    a.label("Lcode_start")
    a(".globl k1_kernel\n.p2align 8\n.type k1_kernel,@function")
    a.label("k1_kernel")
    prologue(a, "1")
    a("s_cmp_lt_u32 s45, 24")
    a("s_cbranch_scc1 LG1")
    a("s_lshl_b32 s42, s44, 5")
    a("s_sub_u32 s46, s45, 24")
    a("s_lshl_b32 s46, s46, 2")
    a("s_add_u32 s42, s42, s46")
    a("s_mov_b32 s63, 1")
    a("s_branch LA")
    gen_G1(a)
    a.label("Lend")
    a("s_endpgm")
    gen_A(a)
    a(".globl k2_kernel\n.p2align 8\n.type k2_kernel,@function")
    a.label("k2_kernel")
    prologue(a, "2")
    a("s_cmp_lt_u32 s45, 20")
    a("s_cbranch_scc1 LG2")
    a("s_mul_i32 s42, s44, 48")
    a("s_sub_u32 s46, s45, 20")
    a("s_lshl_b32 s46, s46, 2")
    a("s_add_u32 s42, s42, s46")
    a("s_add_u32 s42, s42, 256")
    a("s_mov_b32 s63, 0")
    a("s_branch LA")
    gen_G2(a)
    a.label("Lcode_end")
    a.lines, nfix = fix_hazards(a.lines)
    print("hazard nops inserted:", nfix)
    for m in check_hazards(a.lines): print(m)
    txt = hdr
    txt += f"; @launch kernel=k1_kernel grid=(256,1,1) block=(512,1,1) lds={LDS_BYTES}\n"
    txt += f"; @launch kernel=k2_kernel grid=(256,1,1) block=(512,1,1) lds={LDS_BYTES}\n"
    pad = any(e.startswith("ref_") for e in EXP)
    if pad: txt += "; @launch kernel=k3_kernel grid=(1,1,1) block=(64,1,1) lds=0\n"
    txt += '.amdgcn_target "amdgcn-amd-amdhsa--gfx950"\n'
    txt += a.text()
    if pad: txt += PADK
    txt += '.section .rodata,"a"\n' + kd("k1_kernel") + kd("k2_kernel")
    if pad: txt += kd("k3_kernel")
    open(out, "w").write(txt)
if len(sys.argv) > 2 and sys.argv[2] == "stamps": STAMPS = True
main(sys.argv[1] if len(sys.argv) > 1 else f"cdna_kernels/{NAME}.s")
```

```python
def gen(body, iters=20, waves=4):
    L = []; A = L.append
    A(f"; @launch grid=(1,1,1) block=({64*waves},1,1) lds=65536")
    A('.amdgcn_target "amdgcn-amd-amdhsa--gfx950"')
    A(".text\n.globl mb_kernel\n.p2align 8\n.type mb_kernel,@function\nmb_kernel:")
    A("s_load_dwordx4 s[4:7], s[0:1], 0")
    A("s_load_dwordx4 s[8:11], s[0:1], 16")
    A("v_and_b32 v1, 63, v0\nv_lshlrev_b32 v8, 3, v1\nv_lshlrev_b32 v9, 4, v1")
    A("s_mov_b32 s20, 0")
    A("s_waitcnt lgkmcnt(0)\ns_barrier\ns_memtime s[12:13]\ns_waitcnt lgkmcnt(0)")
    A(".p2align 6")
    A("Lloop:")
    for l in body: A(l)
    A("s_add_u32 s20, s20, 1")
    A(f"s_cmp_lt_u32 s20, {iters}")
    A("s_cbranch_scc1 Lloop")
    A("s_waitcnt lgkmcnt(0)\ns_barrier\ns_memtime s[14:15]\ns_waitcnt lgkmcnt(0)")
    A("s_sub_u32 s14, s14, s12\nv_mov_b32 v8, s14\nv_lshrrev_b32 v9, 6, v0\nv_lshlrev_b32 v9, 2, v9")
    A("global_store_dword v9, v8, s[8:9]\ns_waitcnt vmcnt(0)\ns_endpgm")
    A('.section .rodata,"a"\n.p2align 6\n.amdhsa_kernel mb_kernel')
    A(".amdhsa_next_free_vgpr 256\n.amdhsa_next_free_sgpr 32\n.amdhsa_accum_offset 256\n.amdhsa_group_segment_fixed_size 0\n.amdhsa_kernarg_size 32\n.amdhsa_user_sgpr_count 2\n.amdhsa_user_sgpr_kernarg_segment_ptr 1\n.amdhsa_system_sgpr_workgroup_id_x 1\n.end_amdhsa_kernel")
    return "\n".join(L) + "\n"
def vr(b, n): return f"v[{b}:{b+n-1}]"
def mf(ac, a, b): return f"v_mfma_f32_16x16x32_bf16 {vr(ac,4)}, {vr(a,4)}, {vr(b,4)}, {vr(ac,4)}"
def mf32(ac, a, b): return f"v_mfma_f32_32x32x16_bf16 {vr(ac,16)}, {vr(a,4)}, {vr(b,4)}, {vr(ac,16)}"
def tr(b, off): return f"ds_read_b64_tr_b16 {vr(b,2)}, v8 offset:{off}"
V = {}
def body(order, wait_every=1, PD=6, rd=tr):
    B = []
    for n in range(20):
        T = n % 10; b = 112 + 4*(n % 10); nb = 112 + 4*((n+PD) % 10)
        w = f"s_waitcnt lgkmcnt({2*(PD-wait_every)})" if n % wait_every == 0 else None
        items = {"w": w, "m": mf(16+8*T, 96, b), "M": mf(20+8*T, 100, b), "r": rd(nb, 512*n), "R": rd(nb+2, 512*n+10240), "n": "s_nop 0"}
        for c in order:
            if items[c]: B.append(items[c])
    return B
V["mM"] = body("mM")
V["wmM"] = body("wmM")
V["wmrRM"] = body("wmrRM")
V["wmrMR"] = body("wmrMR")
V["wnmrMR"] = body("wnmrMR")
V["mrMR"] = body("mrMR")
V["mrRM"] = body("mrRM")
V["w2mrMR"] = body("wmrMR", 2)
V["w2nmrMR"] = [x for l in body("wmrMR", 2) for x in ([l, "s_nop 0"] if l.startswith("s_wait") else [l])]
V["wmMrR"] = body("wmMrR")
B = []
for n in range(20):
    T = n % 5; b = 112 + 4*(n % 10); nb = 112 + 4*((n+6) % 10)
    B += ["s_waitcnt lgkmcnt(10)", mf32(16+16*T, 96, b), tr(nb, 512*n), tr(nb+2, 512*n+10240)]
V["m32"] = B
for k, b in V.items():
    open(f"lp_{k}.s", "w").write(gen(b))
    open(f"lp8_{k}.s", "w").write(gen(b, waves=8))
```

```python
import re, subprocess, sys
from gen_loop import gen
import os, glob
for f in glob.glob("lp*_*.s"): os.remove(f)
def seg(path):
    t = open(path).read().split("\n")
    i0 = next(i for i, l in enumerate(t) if l.startswith("v_lshlrev_b32 v20, 16, v20"))
    i1 = next(i for i, l in enumerate(t) if l.startswith("ds_write2_b32 v11, v138"))
    body = t[i0:i1+1]
    out = []; skip = False
    for l in body:
        if l.startswith("s_cmp_eq_u32 s63, 0"): skip = True
        if skip:
            if l.startswith("LA_kf:"): skip = False
            continue
        out.append(l)
    return out
pre = ["v_lshrrev_b32 v2, 6, v0", "s_nop 0", "v_readfirstlane_b32 s3, v2", "s_mul_i32 s24, s3, 15504", "s_mov_b32 m0, s24",
       "v_and_b32 v22, 15, v1", "v_lshrrev_b32 v23, 4, v1", "v_mul_u32_u24 v54, 272, v22", "v_lshl_add_u32 v54, v23, 4, v54", "v_add_u32 v54, s24, v54",
       "v_lshlrev_b32 v8, 4, v1", "v_add_u32 v8, s24, v8", "v_mov_b32 v9, v8", "v_mov_b32 v10, v8", "v_mov_b32 v11, v8",
       "v_mov_b32 v16, 0x3f00", "v_mov_b32 v17, 0x3e00", "v_mov_b32 v18, 0x3c80", "v_mov_b32 v19, 0x3c80", "v_mov_b32 v20, 0xc080", "v_mov_b32 v21, 0",
       "s_barrier"]
for name, path in (("old", "k_old.s"), ("new", "k_new.s")):
    b = [l.replace("s53", "s25").replace("s54", "s26").replace("s55", "s27") for l in seg(path)]
    var = {"full": b, "nomm": [l for l in b if "mfma" not in l and "ds_read" not in l and "lgkm" not in l],
           "nowr": [l for l in b if not l.startswith("ds_") and "lgkm" not in l and "mfma" not in l]}
    for k, v in var.items():
        for w in (4, 8):
            s = gen(["s_mov_b32 s25, 0x3fb8aa3b", "s_mov_b32 s26, 0x3e22f983", "s_mov_b32 s27, 0x43000000"] + pre + v + ["s_waitcnt lgkmcnt(0)"], iters=10, waves=w)
            open(f"kz_{name}_{k}_{w}.s", "w").write(s.replace("lds=65536", "lds=131072"))
for f in glob.glob("kz_*.s"): os.remove(f)
b = [l.replace("s53", "s25").replace("s54", "s26").replace("s55", "s27") for l in seg("k_old.s")]
tab = [l for l in b if "mfma" not in l and "ds_read" not in l and "lgkm" not in l and not re.match(r"ds_write(_b128|_b64|2_b32)", l) and "s_nop" not in l and "p2align" not in l]
tab = [x for l in tab for x in ([".p2align 3", l] if l.startswith("v_pk_mul_f32 v[26:27]") else [l])]
rd = [l for l in b if "ds_read" in l]
mm = [l for l in b if "mfma" in l]
wr = [l for l in b if re.match(r"ds_write(_b128|_b64|2_b32)", l)]
Y, T0, T1, T2 = rd[0:4], rd[4:8], rd[8:12], rd[12:16]
def endv():
    o = []
    for k in range(4): o += [Y[k], T0[k], T1[k], T2[k]]
    for k in range(4):
        o.append(f"s_waitcnt lgkmcnt({12-4*k})")
        o += [mm[k], mm[4+k], mm[8+k]]
    return o + ["s_nop 7"] + wr
def early():
    o = []; n = 0
    for l in tab:
        o.append(l)
        if l.startswith("ds_write_addtid"):
            n += 1
            if n == 16: o += Y
            if n == 32: o += T0
            if n == 48: o += T1
    o += T2
    o += ["s_waitcnt lgkmcnt(4)"] + [x for k in range(4) for x in (mm[k], mm[4+k])]
    for k in range(4): o += [f"s_waitcnt lgkmcnt({3-k})", mm[8+k]]
    return o + wr[:3] + ["s_nop 5"] + wr[3:]
var = {"full": b, "end": tab + endv(), "early": early(), "tab": tab}
pre2 = [l for l in pre]
pre2[pre2.index("v_mov_b32 v9, v8")] = "v_lshlrev_b32 v9, 3, v1\nv_add_u32 v9, s24, v9"
pre2[pre2.index("v_mov_b32 v10, v8")] = "v_add_u32 v10, 512, v9"
pre2[pre2.index("v_mov_b32 v11, v8")] = "v_lshlrev_b32 v11, 8, v23\nv_lshl_add_u32 v11, v22, 2, v11\nv_add_u32 v11, s24, v11"
for k, v in var.items():
    for w in (4, 8):
        s = gen(["s_mov_b32 s25, 0x3fb8aa3b", "s_mov_b32 s26, 0x3e22f983", "s_mov_b32 s27, 0x43000000"] + pre2 + v + ["s_waitcnt lgkmcnt(0)"], iters=10, waves=w)
        open(f"kz_{k}_{w}.s", "w").write(s.replace("lds=65536", "lds=131072"))
```
